```python
import torch

def _softmax(x, axis=-1):
    return torch.softmax(x, dim=axis)
def _gelu(x):
    return torch.nn.functional.gelu(x, approximate="tanh")
def _silu(x):
    return torch.nn.functional.silu(x)
def _sigmoid(x):
    return torch.sigmoid(x)
def _layernorm(x, axis=-1, eps=1e-5):
    m = x.mean(dim=axis, keepdim=True)
    v = x.var(dim=axis, keepdim=True, unbiased=False)
    return (x - m) / torch.sqrt(v + eps)
def _scatter_add(tgt, idx, src, axis=0):
    return tgt.clone().index_add_(axis, idx, src)
def _segment_sum(src, seg, n):
    out = torch.zeros((n,) + src.shape[1:], dtype=src.dtype)
    return out.index_add_(0, seg, src)
def _pad(x, pw):
    flat = tuple(v for pair in reversed(pw) for v in pair)
    return torch.nn.functional.pad(x, flat)

kernel_name = 'standalone__gqa_block_cached__near_ridge'

def setup_inputs():

    _w = (lambda a: (lambda t: t.to(torch.bfloat16) if t.is_floating_point() else t)(torch.as_tensor(a)))
    B, Sq, D = 16, 64, 512
    Hq, Hkv, Sk, Dh = 32, 32, 64, 128
    assert Hq % Hkv == 0, (Hq, Hkv)
    return {
        "x": _w((lambda *s: torch.randn(*s, dtype=torch.bfloat16) * 0.8)(B, Sq, D)),
        "k_cache": _w((lambda *s: torch.randn(*s, dtype=torch.bfloat16) * 0.8)(B, Hkv, Sk, Dh)),
        "v_cache": _w((lambda *s: torch.randn(*s, dtype=torch.bfloat16) * 0.05)(B, Hkv, Sk, Dh)),
        "wq": _w((lambda *s: torch.randn(*s, dtype=torch.bfloat16) * 0.8)(D, Hq * Dh) * (D ** -0.5)),
        "wo": _w((lambda *s: torch.randn(*s, dtype=torch.bfloat16) * 0.05)(Hq * Dh, D) * ((Hq * Dh) ** -0.5)),
    }

def reference(x, k_cache, v_cache, wq, wo):
    B, Sq, D = x.shape
    Hq, Dh = 32, 128
    Hkv = k_cache.shape[1]
    rep = Hq // Hkv
    q = (lambda x, *d: x.permute(*d))((x @ wq).reshape(B, Sq, Hq, Dh), 0, 2, 1, 3)
    k = (lambda x, n, axis: torch.repeat_interleave(x, n, dim=axis))(k_cache, rep, axis=1)
    v = (lambda x, n, axis: torch.repeat_interleave(x, n, dim=axis))(v_cache, rep, axis=1)
    scores = torch.einsum("bhqd,bhkd->bhqk", q, k) * (Dh ** -0.5)
    p = _softmax(scores, axis=-1)
    o = torch.einsum("bhqk,bhkd->bhqd", p, v)
    return (lambda x, *d: x.permute(*d))(o, 0, 2, 1, 3).reshape(B, Sq, Hq * Dh) @ wo
```

```python
import sys, math

STAMPS = '--stamps' in sys.argv
NSTAMP = 8
STAMP_OFF = 0x8000000

class A:
    def __init__(s): s.l = []
    def __call__(s, x): s.l.append('  ' + x)
    def lab(s, x): s.l.append(x + ':')
    def c(s, x): s.l.append('  ; ' + x)
    def txt(s): return '\n'.join(s.l) + '\n'

a = A()

S_X, S_K, S_V, S_WQ, S_WO, S_OUT, S_DBG, S_WS = 16, 18, 20, 22, 24, 26, 28, 30
S_WAVE, S_HG, S_BP, S_M, S_H, S_ROT, S_T0, S_T1, S_T2, S_T3 = 3, 4, 5, 6, 7, 8, 9, 10, 11, 12
S_BPL = 13
SRD0, SRD1 = 32, 36
S_CNT, S_SLOT, S_KC = 40, 41, 42
S_C, S_NC = 43, 44
S_ST = 64

LDS_K = 98304
LDS_V = 131072
WS_O = 0
WS_P = 8 << 20

def stamp(i):
    if STAMPS: a(f's_memrealtime s[{S_ST+2*i}:{S_ST+2*i+1}]')

def stamp_init():
    if STAMPS:
        for i in range(NSTAMP):
            a(f's_mov_b64 s[{S_ST+2*i}:{S_ST+2*i+1}], 0')

def stamp_flush(kidx, nwave):
    if not STAMPS: return
    a('s_waitcnt vmcnt(0) lgkmcnt(0)')
    a(f's_add_u32 s56, s{S_WS}, {STAMP_OFF + kidx*0x100000}')
    a(f's_addc_u32 s57, s{S_WS+1}, 0')
    a('s_mov_b32 s58, 0x100000')
    a('s_mov_b32 s59, 0x20000')
    a(f's_lshl_b32 s60, s2, 3')
    a(f's_add_u32 s60, s60, s{S_WAVE}')
    a(f's_mul_i32 s60, s60, {NSTAMP*8}')
    a('s_mov_b64 s[62:63], exec')
    a('s_mov_b64 exec, 1')
    a('v_mov_b32 v250, 0')
    for i in range(NSTAMP):
        a(f'v_mov_b32 v252, s{S_ST+2*i}')
        a(f'v_mov_b32 v253, s{S_ST+2*i+1}')
        a(f'buffer_store_dwordx2 v[252:253], v250, s[56:59], s60 offen offset:{i*8}')
        a('s_nop 1')
    a('s_waitcnt vmcnt(0)')
    a('s_mov_b64 exec, s[62:63]')

def prologue(endlab, nwg=256):
    a(f's_cmp_ge_u32 s2, {nwg}')
    a(f's_cbranch_scc1 {endlab}')
    a('s_load_dwordx16 s[16:31], s[0:1], 0')
    stamp_init()
    stamp(0)
    a('v_lshrrev_b32 v1, 6, v0')
    a('v_and_b32 v0, 63, v0')
    a(f'v_readfirstlane_b32 s{S_WAVE}, v1')
    a(f's_and_b32 s{S_HG}, s2, 3')
    a(f's_bfe_u32 s{S_T0}, s2, 0x10002')
    a(f's_bfe_u32 s{S_M}, s2, 0x30003')
    a(f's_lshr_b32 s{S_BPL}, s2, 6')
    a(f's_lshl_b32 s{S_BP}, s{S_T0}, 2')
    a(f's_add_u32 s{S_BP}, s{S_BP}, s{S_BPL}')
    a(f's_lshl_b32 s{S_H}, s{S_HG}, 3')
    a(f's_add_u32 s{S_H}, s{S_H}, s{S_M}')
    a(f's_lshl_b32 s{S_ROT}, s{S_BPL}, 1')
    a(f's_add_u32 s{S_ROT}, s{S_ROT}, s{S_M}')
    a(f's_and_b32 s{S_ROT}, s{S_ROT}, 7')
    a('s_waitcnt lgkmcnt(0)')

def srd(dst, ptr, off_sgpr, nbytes_total):
    a(f's_add_u32 s{dst}, s{ptr}, s{off_sgpr}')
    a(f's_addc_u32 s{dst+1}, s{ptr+1}, 0')
    a(f's_and_b32 s{dst+1}, s{dst+1}, 0xffff')
    a(f's_sub_u32 s{dst+2}, {nbytes_total}, s{off_sgpr}')
    a(f's_mov_b32 s{dst+3}, 0x20000')

def mfma(d, aa, b, c=None):
    cc = f'v[{d}:{d+15}]' if c is None else c
    a(f'v_mfma_f32_32x32x16_bf16 v[{d}:{d+15}], v[{aa}:{aa+3}], v[{b}:{b+3}], {cc}')

def lane_fields():
    a('v_and_b32 v1, 31, v0')
    a('v_lshrrev_b32 v2, 5, v0')
    a('v_bfe_u32 v3, v0, 2, 2')
    a('v_and_b32 v4, 3, v0')
    a('v_bfe_u32 v5, v0, 4, 1')
    a('v_lshl_or_b32 v6, v5, 2, v4')

def k1():
    a.l.append('.p2align 8')
    a.l.append('.globl p1_kernel')
    a.l.append('.type p1_kernel,@function')
    a.lab('p1_kernel')
    prologue('K1_END')
    a(f's_cmp_ge_u32 s{S_WAVE}, 4')
    a('s_cbranch_scc1 K1_LOADERS')
    lane_fields()
    ACC = 64; AB = [128, 144]; BB = [160, 164]
    XB = 8; WB = 12; XC = 16; WC = 20
    a(f's_lshl_b32 s{S_T0}, s{S_WAVE}, 12')
    a('v_bfe_u32 v7, v1, 1, 3')
    a('v_xor_b32 v7, v7, v2')
    a('v_lshlrev_b32 v7, 4, v7')
    a('v_lshl_add_u32 v7, v1, 7, v7')
    a(f'v_add_u32 v{XB}, s{S_T0}, v7')
    for st in range(1, 4):
        a(f'v_xor_b32 v{XB+st}, {st<<5}, v{XB}')
    a('v_and_b32 v24, 4, v6')
    a('v_and_b32 v25, 1, v6')
    a('v_lshl_or_b32 v24, v25, 1, v24')
    a('v_bfe_u32 v25, v6, 1, 1')
    a('v_or_b32 v24, v24, v25')
    a('v_lshl_add_u32 v25, v2, 3, v3')
    a('v_lshlrev_b32 v25, 8, v25')
    a('v_lshl_add_u32 v25, v24, 3, v25')
    a('v_add_u32 v25, 16384, v25')
    for T in range(4):
        a(f'v_xor_b32 v26, {T}, v3')
        a(f'v_lshl_add_u32 v{WB+T}, v26, 6, v25')
    for i in range(64):
        a(f'v_mov_b32 v{ACC+i}, 0')
    for i in range(4):
        a(f'v_mov_b32 v{XC+i}, v{XB+i}')
        a(f'v_mov_b32 v{WC+i}, v{WB+i}')
    a(f's_mov_b32 s{S_SLOT}, 0')
    a(f's_mov_b32 s{S_CNT}, 0')

    def rdB(st, buf): a(f'ds_read_b128 v[{BB[buf]}:{BB[buf]+3}], v{XC+st}')
    def rdA(st, T, buf):
        for u in range(2):
            d = AB[buf] + 4*T + 2*u
            a(f'ds_read_b64_tr_b16 v[{d}:{d+1}], v{WC+T} offset:{st*4096+u*1024}')
    a('s_barrier')
    stamp(1)
    rdB(0, 0)
    for T in range(4): rdA(0, T, 0)
    a.lab('K1_LOOP')
    for st in range(3):
        buf = st & 1; nb = buf ^ 1
        a('s_waitcnt lgkmcnt(6)')
        mfma(ACC + 0, AB[buf] + 0, BB[buf])
        rdB(st + 1, nb); rdA(st + 1, 0, nb)
        a('s_waitcnt lgkmcnt(7)')
        mfma(ACC + 16, AB[buf] + 4, BB[buf])
        rdA(st + 1, 1, nb)
        a('s_waitcnt lgkmcnt(7)')
        mfma(ACC + 32, AB[buf] + 8, BB[buf])
        rdA(st + 1, 2, nb)
        a('s_waitcnt lgkmcnt(7)')
        mfma(ACC + 48, AB[buf] + 12, BB[buf])
        rdA(st + 1, 3, nb)
    a('s_waitcnt lgkmcnt(6)')
    mfma(ACC + 0, AB[1] + 0, BB[1])
    a(f's_add_u32 s{S_SLOT}, s{S_SLOT}, 32768')
    a(f's_cmp_eq_u32 s{S_SLOT}, 98304')
    a(f's_cselect_b32 s{S_SLOT}, 0, s{S_SLOT}')
    a('s_waitcnt lgkmcnt(4)')
    mfma(ACC + 16, AB[1] + 4, BB[1])
    for i in range(4):
        a(f'v_add_u32 v{XC+i}, s{S_SLOT}, v{XB+i}')
        a(f'v_add_u32 v{WC+i}, s{S_SLOT}, v{WB+i}')
    a(f's_add_u32 s{S_CNT}, s{S_CNT}, 1')
    a(f's_cmp_eq_u32 s{S_CNT}, 8')
    a('s_waitcnt lgkmcnt(0)')
    a('s_cbranch_scc1 K1_QDONE')
    a('s_barrier')
    rdB(0, 0); rdA(0, 0, 0); rdA(0, 1, 0)
    mfma(ACC + 32, AB[1] + 8, BB[1])
    rdA(0, 2, 0)
    mfma(ACC + 48, AB[1] + 12, BB[1])
    rdA(0, 3, 0)
    a('s_branch K1_LOOP')
    a.lab('K1_QDONE')
    mfma(ACC + 32, AB[1] + 8, BB[1])
    mfma(ACC + 48, AB[1] + 12, BB[1])
    stamp(2)
    QF = 168; SA = 200; PF = 232
    KA = 8
    VA = 16
    a(f's_lshr_b32 s{S_T0}, s{S_WAVE}, 1')
    a(f's_lshl_b32 s{S_T0}, s{S_T0}, 14')
    a(f's_add_u32 s{S_T1}, s{S_T0}, {LDS_K}')
    a(f's_add_u32 s{S_T2}, s{S_T0}, {LDS_V}')
    a('v_and_b32 v24, 15, v1')
    a('v_xor_b32 v24, v24, v2')
    a('v_lshlrev_b32 v24, 4, v24')
    a('v_lshl_add_u32 v24, v1, 8, v24')
    a(f'v_add_u32 v{KA}, s{S_T1}, v24')
    for st in range(1, 8):
        a(f'v_xor_b32 v{KA+st}, {st<<5}, v{KA}')
    a('v_lshl_add_u32 v25, v2, 2, v3')
    a('v_lshlrev_b32 v25, 8, v25')
    a('v_lshl_add_u32 v25, v6, 3, v25')
    a(f'v_add_u32 v25, s{S_T2}, v25')
    for T in range(4):
        a(f'v_xor_b32 v26, {T}, v3')
        a(f'v_lshl_add_u32 v{VA+T}, v26, 6, v25')
    a('s_barrier')
    stamp(3)
    KF = 128
    def rdK(st, Tk, slot): a(f'ds_read_b128 v[{KF+4*slot}:{KF+4*slot+3}], v{KA+st} offset:{Tk*8192}')
    for st in range(4):
        for Tk in range(2): rdK(st, Tk, 2*st + Tk)
    for T in range(4):
        for j in range(8):
            a(f'v_cvt_pk_bf16_f32 v{QF+8*T+j}, v{ACC+16*T+2*j}, v{ACC+16*T+2*j+1}')
    a('s_nop 1')
    for st in range(8):
        for Tk in range(2):
            idx = 2*st + Tk
            slot = idx % 8
            if st < 4:
                a(f's_waitcnt lgkmcnt({7})' if True else '')
            else:
                a(f's_waitcnt lgkmcnt({15 - idx})')
            mfma(SA + 16*Tk, KF + 4*slot, QF + 4*st, '0' if st == 0 else None)
            if st < 4: rdK(st + 4, Tk, slot)
    c = math.log2(math.e) / math.sqrt(128.0)
    import struct
    cb = struct.unpack('<I', struct.pack('<f', c))[0]
    a(f's_mov_b32 s{S_C}, {hex(cb)}')
    a(f's_mov_b32 s{S_NC}, {hex(cb ^ 0x80000000)}')
    a('s_barrier')
    stamp(4)
    def rdV(ks, T, buf):
        for u in range(2):
            d = AB[buf] + 4*T + 2*u
            a(f'ds_read_b64_tr_b16 v[{d}:{d+1}], v{VA+T} offset:{ks*4096+u*2048}')
    a('s_nop 7')
    a('s_nop 3')
    for T in range(4): rdV(0, T, 0)
    a(f'v_max3_f32 v24, v{SA}, v{SA+1}, v{SA+2}')
    a(f'v_max3_f32 v25, v{SA+3}, v{SA+4}, v{SA+5}')
    k = 6
    tog = 0
    while k < 32:
        d = 24 + tog
        a(f'v_max3_f32 v{d}, v{d}, v{SA+k}, v{SA+k+1}')
        k += 2; tog ^= 1
    a('v_max_f32 v24, v24, v25')
    a('v_mov_b32 v25, v24')
    a('s_nop 1')
    a('v_permlane32_swap_b32 v25, v24')
    a('s_nop 1')
    a('v_max_f32 v24, v24, v25')
    a(f'v_mul_f32 v24, s{S_NC}, v24')
    for i in range(32):
        a(f'v_fma_f32 v{SA+i}, v{SA+i}, s{S_C}, v24')
    for i in range(32):
        a(f'v_exp_f32 v{SA+i}, v{SA+i}')
    a('s_nop 0')
    a(f'v_add_f32 v25, v{SA}, v{SA+1}')
    a(f'v_add_f32 v26, v{SA+2}, v{SA+3}')
    for i in range(4, 32, 2):
        a(f'v_add_f32 v25, v25, v{SA+i}')
        a(f'v_add_f32 v26, v26, v{SA+i+1}')
    a('v_add_f32 v25, v25, v26')
    a('v_mov_b32 v26, v25')
    a('s_nop 1')
    a('v_permlane32_swap_b32 v26, v25')
    a('s_nop 1')
    a('v_add_f32 v25, v25, v26')
    a('v_rcp_f32 v25, v25')
    a('s_nop 0')
    for i in range(32):
        a(f'v_mul_f32 v{SA+i}, v{SA+i}, v25')
    for j in range(16):
        a(f'v_cvt_pk_bf16_f32 v{PF+j}, v{SA+2*j}, v{SA+2*j+1}')
    a('s_nop 1')
    for ks in range(4):
        buf = ks & 1
        for T in range(4):
            if ks < 3:
                a(f's_waitcnt lgkmcnt({6})')
            else:
                a(f's_waitcnt lgkmcnt({6 - 2*T})')
            mfma(ACC + 16*T, AB[buf] + 4*T, PF + 4*ks, '0' if ks == 0 else None)
            if ks < 3: rdV(ks + 1, T, buf ^ 1)
    a(f's_lshl_b32 s{S_T0}, s{S_BP}, 2')
    a(f's_add_u32 s{S_T0}, s{S_T0}, s{S_WAVE}')
    a(f's_lshl_b32 s{S_T0}, s{S_T0}, 5')
    a(f's_add_u32 s{S_T0}, s{S_T0}, s{S_H}')
    a(f's_lshl_b32 s{S_T0}, s{S_T0}, 13')
    srd(SRD0, S_WS, S_T0, 8 << 20)
    a('v_lshlrev_b32 v24, 4, v0')
    a('s_nop 3')
    for T in range(4):
        for tp in range(2):
            f = 2*T + tp
            d = QF + 4*f
            for j in range(4):
                a(f'v_cvt_pk_bf16_f32 v{d+j}, v{ACC+16*T+8*tp+2*j}, v{ACC+16*T+8*tp+2*j+1}')
            if f < 4:
                a(f'buffer_store_dwordx4 v[{d}:{d+3}], v24, s[{SRD0}:{SRD0+3}], 0 offen offset:{f*1024}')
            else:
                if f == 4: a(f's_mov_b32 s{S_T1}, 4096')
                a(f'buffer_store_dwordx4 v[{d}:{d+3}], v24, s[{SRD0}:{SRD0+3}], s{S_T1} offen offset:{(f-4)*1024}')
    stamp(5)
    stamp_flush(0, 8)
    a('s_endpgm')
    a.lab('K1_LOADERS')
    a(f's_cmp_eq_u32 s{S_WAVE}, 5')
    a('s_cbranch_scc1 K1_LW')
    a(f's_cmp_eq_u32 s{S_WAVE}, 6')
    a('s_cbranch_scc1 K1_LK')
    a(f's_cmp_eq_u32 s{S_WAVE}, 7')
    a('s_cbranch_scc1 K1_LV')

    def stream_loader(name, setup, issue):
        setup()
        a(f's_mov_b32 s{S_CNT}, 0')
        a(f's_mov_b32 s{S_SLOT}, 0')
        a(f's_mov_b32 s{S_KC}, s{S_ROT}')
        a.lab(name + '_LOOP')
        a(f's_cmp_lg_u32 s{S_CNT}, 3')
        a(f's_cbranch_scc1 {name}_N3')
        a('s_waitcnt vmcnt(32)')
        stamp(1)
        a('s_barrier')
        a.lab(name + '_N3')
        a(f's_cmp_lt_u32 s{S_CNT}, 3')
        a(f's_cbranch_scc1 {name}_ISS')
        a('s_waitcnt vmcnt(16)')
        a('s_barrier')
        a.lab(name + '_ISS')
        issue()
        a(f's_add_u32 s{S_SLOT}, s{S_SLOT}, 32768')
        a(f's_cmp_eq_u32 s{S_SLOT}, 98304')
        a(f's_cselect_b32 s{S_SLOT}, 0, s{S_SLOT}')
        a(f's_add_u32 s{S_KC}, s{S_KC}, 1')
        a(f's_and_b32 s{S_KC}, s{S_KC}, 7')
        a(f's_add_u32 s{S_CNT}, s{S_CNT}, 1')
        a(f's_cmp_lt_u32 s{S_CNT}, 8')
        a(f's_cbranch_scc1 {name}_LOOP')
        a('s_waitcnt vmcnt(16)')
        a('s_barrier')
        a('s_waitcnt vmcnt(0)')
        stamp(2)
        a('s_barrier')
        stamp_flush(0, 8)
        a('s_endpgm')

    def x_setup():
        a(f's_lshl_b32 s{S_T0}, s{S_BP}, 17')
        srd(SRD0, S_X, S_T0, 1 << 20)
        for par in range(2):
            a('v_lshrrev_b32 v1, 4, v0')
            a(f'v_add_u32 v1, {4*par}, v1')
            a('v_and_b32 v2, 7, v0')
            a('v_xor_b32 v1, v1, v2')
            a('v_lshlrev_b32 v1, 4, v1')
            a('v_lshrrev_b32 v2, 3, v0')
            a(f'v_lshl_add_u32 v{8+par}, v2, 10, v1')
    def x_issue():
        a(f's_lshl_b32 s{S_T0}, s{S_KC}, 7')
        a(f's_mov_b32 s{S_T1}, s{S_SLOT}')
        for q in range(16):
            a(f's_mov_b32 m0, s{S_T1}')
            a(f's_add_u32 s{S_T1}, s{S_T1}, 1024')
            a(f'buffer_load_dwordx4 v{8+(q&1)}, s[{SRD0}:{SRD0+3}], s{S_T0} offen lds')
            a(f's_add_u32 s{S_T0}, s{S_T0}, 8192')
    stream_loader('K1_LX', x_setup, x_issue)

    a.lab('K1_LW')
    def blk_pattern(dst, rowstride_shift):
        a('v_lshrrev_b32 v1, 4, v0')
        a('v_bfe_u32 v2, v0, 2, 2')
        a('v_xor_b32 v2, v2, v1')
        a('v_and_b32 v3, 3, v0')
        a('v_lshlrev_b32 v3, 4, v3')
        a('v_lshl_add_u32 v3, v2, 6, v3')
        a(f'v_lshl_add_u32 v{dst}, v1, {rowstride_shift}, v3')
    def w_setup():
        a(f's_lshl_b32 s{S_T0}, s{S_H}, 8')
        srd(SRD0, S_WQ, S_T0, 4 << 20)
        blk_pattern(8, 13)
    def w_issue():
        a(f's_lshl_b32 s{S_T0}, s{S_KC}, 19')
        a(f's_add_u32 s{S_T1}, s{S_SLOT}, 16384')
        for q in range(16):
            a(f's_mov_b32 m0, s{S_T1}')
            a(f's_add_u32 s{S_T1}, s{S_T1}, 1024')
            a(f'buffer_load_dwordx4 v8, s[{SRD0}:{SRD0+3}], s{S_T0} offen lds')
            a(f's_add_u32 s{S_T0}, s{S_T0}, 32768')
    stream_loader('K1_LW', w_setup, w_issue)

    def kv_base(ptr):
        a(f's_lshl_b32 s{S_T0}, s{S_BP}, 6')
        a(f's_add_u32 s{S_T0}, s{S_T0}, s{S_H}')
        a(f's_lshl_b32 s{S_T0}, s{S_T0}, 14')
        srd(SRD0, ptr, S_T0, 8 << 20)
    a.lab('K1_LK')
    kv_base(S_K)
    for qq in range(4):
        a('v_lshrrev_b32 v1, 4, v0')
        a(f'v_add_u32 v2, {4*qq}, v1')
        a('v_and_b32 v3, 15, v0')
        a('v_xor_b32 v2, v2, v3')
        a('v_lshlrev_b32 v2, 4, v2')
        a(f'v_lshl_add_u32 v{8+qq}, v1, 8, v2')
    for bb in range(2):
        for q in range(16):
            a(f's_mov_b32 m0, {LDS_K + bb*16384 + q*1024}')
            a(f's_mov_b32 s{S_T0}, {bb*524288 + q*1024}')
            a(f'buffer_load_dwordx4 v{8+(q&3)}, s[{SRD0}:{SRD0+3}], s{S_T0} offen lds')
    for i in range(8): a('s_barrier')
    a('s_waitcnt vmcnt(0)')
    stamp(1)
    a('s_barrier')
    stamp_flush(0, 8)
    a('s_endpgm')
    a.lab('K1_LV')
    kv_base(S_V)
    blk_pattern(8, 8)
    for bb in range(2):
        for q in range(16):
            a(f's_mov_b32 m0, {LDS_V + bb*16384 + q*1024}')
            a(f's_mov_b32 s{S_T0}, {bb*524288 + q*1024}')
            a(f'buffer_load_dwordx4 v8, s[{SRD0}:{SRD0+3}], s{S_T0} offen lds')
    for i in range(9): a('s_barrier')
    a('s_waitcnt vmcnt(0)')
    stamp(1)
    a('s_barrier')
    stamp_flush(0, 8)
    a.lab('K1_END')
    a('s_endpgm')

def k2():
    a.l.append('.p2align 8')
    a.l.append('.globl p2_kernel')
    a.l.append('.type p2_kernel,@function')
    a.lab('p2_kernel')
    prologue('K2_END')
    a(f's_cmp_ge_u32 s{S_WAVE}, 4')
    a('s_cbranch_scc1 K2_LOADERS')
    lane_fields()
    ACC = 32; AB = [64, 72]; BF = 128
    WA = 8
    a(f's_lshl_b32 s{S_T0}, s{S_BP}, 2')
    a(f's_add_u32 s{S_T0}, s{S_T0}, s{S_WAVE}')
    a(f's_lshl_b32 s{S_T0}, s{S_T0}, 5')
    a(f's_lshl_b32 s{S_T1}, s{S_HG}, 3')
    a(f's_add_u32 s{S_T0}, s{S_T0}, s{S_T1}')
    a(f's_lshl_b32 s{S_T0}, s{S_T0}, 13')
    srd(SRD0, S_WS, S_T0, 8 << 20)
    a('v_lshlrev_b32 v7, 4, v0')
    for n in range(8):
        a(f's_add_u32 s{44+n}, s{S_ROT}, {n}')
        a(f's_and_b32 s{44+n}, s{44+n}, 7')
        a(f's_lshl_b32 s{44+n}, s{44+n}, 13')
    def ldB(n, ks):
        slot = (n % 4) * 8 + ks
        d = BF + 4*slot
        if ks < 4:
            a(f'buffer_load_dwordx4 v[{d}:{d+3}], v7, s[{SRD0}:{SRD0+3}], s{44+n} offen offset:{ks*1024}')
        else:
            a(f'buffer_load_dwordx4 v[{d}:{d+3}], v12, s[{SRD0}:{SRD0+3}], s{44+n} offen offset:{(ks-4)*1024}')
    a('v_add_u32 v12, 4096, v7')
    for n in range(4):
        for ks in range(8): ldB(n, ks)
    a('v_and_b32 v24, 1, v6')
    a('v_lshrrev_b32 v25, 1, v6')
    a('v_lshl_or_b32 v24, v24, 2, v25')
    a('v_lshl_add_u32 v25, v2, 2, v3')
    a('v_lshlrev_b32 v25, 7, v25')
    a('v_lshl_add_u32 v25, v24, 3, v25')
    a('v_lshrrev_b32 v26, 1, v3')
    for T in range(2):
        a(f'v_xor_b32 v27, {T}, v26')
        a(f'v_lshl_add_u32 v{WA+T}, v27, 6, v25')
    def rdA(ks, buf):
        for T in range(2):
            for u in range(2):
                d = AB[buf] + 4*T + 2*u
                a(f'ds_read_b64_tr_b16 v[{d}:{d+1}], v{WA+2+T} offset:{ks*2048+u*1024}')
    first = True
    for n in range(8):
        a(f's_lshl_b32 s{S_T0}, s{44+n}, 1')
        a(f'v_add_u32 v{WA+2}, s{S_T0}, v{WA}')
        a(f'v_add_u32 v{WA+3}, s{S_T0}, v{WA+1}')
        a('s_barrier')
        if n == 0: stamp(1)
        rdA(0, 0)
        for ks in range(8):
            buf = ks & 1
            if ks < 7: rdA(ks + 1, buf ^ 1)
            slot = (n % 4) * 8 + ks
            vm = 31 if n < 4 else (63 - (n*8 + ks))
            a(f's_waitcnt vmcnt({vm}) lgkmcnt({4 if ks < 7 else 0})')
            for T in range(2):
                mfma(ACC + 16*T, AB[buf] + 4*T, BF + 4*slot, '0' if first else None)
            first = False
            if n < 4: ldB(n + 4, ks)
    stamp(2)
    a(f's_lshl_b32 s{S_T0}, s{S_BP}, 3')
    a(f's_add_u32 s{S_T0}, s{S_T0}, s{S_M}')
    a(f's_lshl_b32 s{S_T0}, s{S_T0}, 2')
    a(f's_add_u32 s{S_T0}, s{S_T0}, s{S_WAVE}')
    a(f's_lshl_b32 s{S_T0}, s{S_T0}, 2')
    a(f's_add_u32 s{S_T0}, s{S_T0}, s{S_HG}')
    a(f's_lshl_b32 s{S_T0}, s{S_T0}, 13')
    a(f's_add_u32 s{S_T0}, s{S_T0}, {WS_P}')
    srd(SRD1, S_WS, S_T0, 16 << 20)
    a('s_nop 7')
    for g in range(8):
        d = ACC + 4*g
        if g < 4:
            a(f'buffer_store_dwordx4 v[{d}:{d+3}], v7, s[{SRD1}:{SRD1+3}], 0 offen offset:{g*1024}')
        else:
            a(f'buffer_store_dwordx4 v[{d}:{d+3}], v12, s[{SRD1}:{SRD1+3}], 0 offen offset:{(g-4)*1024}')
    stamp(3)
    stamp_flush(1, 8)
    a('s_endpgm')
    a.lab('K2_LOADERS')
    a(f's_lshl_b32 s{S_T0}, s{S_HG}, 20')
    a(f's_lshl_b32 s{S_T1}, s{S_M}, 7')
    a(f's_add_u32 s{S_T0}, s{S_T0}, s{S_T1}')
    srd(SRD0, S_WO, S_T0, 4 << 20)
    a('v_lshrrev_b32 v1, 3, v0')
    a('v_bfe_u32 v2, v0, 2, 1')
    a('v_bfe_u32 v3, v0, 4, 1')
    a('v_xor_b32 v2, v2, v3')
    a('v_and_b32 v3, 3, v0')
    a('v_lshlrev_b32 v3, 4, v3')
    a('v_lshl_add_u32 v3, v2, 6, v3')
    a('v_lshl_add_u32 v8, v1, 10, v3')
    a(f's_sub_u32 s{S_T2}, s{S_WAVE}, 4')
    for n in range(8):
        a(f's_add_u32 s{S_T3}, s{S_ROT}, {n}')
        a(f's_and_b32 s{S_T3}, s{S_T3}, 7')
        a(f's_lshl_b32 s{S_T3}, s{S_T3}, 2')
        a(f's_add_u32 s{S_T3}, s{S_T3}, s{S_T2}')
        a(f's_lshl_b32 s{S_T0}, s{S_T3}, 15')
        a(f's_lshl_b32 s{S_T1}, s{S_T3}, 12')
        for q in range(4):
            a(f's_mov_b32 m0, s{S_T1}')
            a(f's_add_u32 s{S_T1}, s{S_T1}, 1024')
            a(f'buffer_load_dwordx4 v8, s[{SRD0}:{SRD0+3}], s{S_T0} offen lds')
            a(f's_add_u32 s{S_T0}, s{S_T0}, 8192')
    for n in range(8):
        a(f's_waitcnt vmcnt({28 - 4*n})')
        if n == 0: stamp(1)
        if n == 7: stamp(2)
        a('s_barrier')
    stamp_flush(1, 8)
    a.lab('K2_END')
    a('s_endpgm')

def k3():
    a.l.append('.p2align 8')
    a.l.append('.globl p3_kernel')
    a.l.append('.type p3_kernel,@function')
    a.lab('p3_kernel')
    a('s_cmp_ge_u32 s2, 256')
    a('s_cbranch_scc1 K3_END')
    a('s_load_dwordx16 s[16:31], s[0:1], 0')
    stamp_init()
    stamp(0)
    a(f's_mov_b32 s{S_WAVE}, 0')
    a(f's_lshl_b32 s{S_T0}, s2, 15')
    a(f's_add_u32 s{S_T0}, s{S_T0}, {WS_P}')
    a('v_lshlrev_b32 v7, 4, v0')
    a('s_waitcnt lgkmcnt(0)')
    srd(SRD0, S_WS, S_T0, 16 << 20)
    for i in range(32):
        if i % 4 == 0: a(f's_mov_b32 s{S_T1}, {i*1024}')
        a(f'buffer_load_dwordx4 v[{64+4*i}:{64+4*i+3}], v7, s[{SRD0}:{SRD0+3}], s{S_T1} offen offset:{(i%4)*1024}')
    a(f's_lshr_b32 s{S_BP}, s2, 5')
    a(f's_bfe_u32 s{S_M}, s2, 0x30002')
    a(f's_and_b32 s{S_T2}, s2, 3')
    a(f's_lshl_b32 s{S_T0}, s{S_BP}, 2')
    a(f's_add_u32 s{S_T0}, s{S_T0}, s{S_T2}')
    a(f's_lshl_b32 s{S_T0}, s{S_T0}, 15')
    a(f's_lshl_b32 s{S_T1}, s{S_M}, 7')
    a(f's_add_u32 s{S_T0}, s{S_T0}, s{S_T1}')
    srd(SRD1, S_OUT, S_T0, 1 << 20)
    a('v_and_b32 v1, 31, v0')
    a('v_lshrrev_b32 v2, 5, v0')
    a('v_lshlrev_b32 v1, 10, v1')
    a('v_lshl_add_u32 v1, v2, 5, v1')
    a('s_waitcnt vmcnt(0)')
    for i in range(32):
        a(f'v_add_f32 v{64+i}, v{64+i}, v{96+i}')
        a(f'v_add_f32 v{128+i}, v{128+i}, v{160+i}')
    for i in range(32):
        a(f'v_add_f32 v{64+i}, v{64+i}, v{128+i}')
    for j in range(16):
        a(f'v_cvt_pk_bf16_f32 v{32+j}, v{64+2*j}, v{64+2*j+1}')
    for T in range(2):
        for hh in range(2):
            d = 32 + 8*T + 4*hh
            a(f'buffer_store_dwordx4 v[{d}:{d+3}], v1, s[{SRD1}:{SRD1+3}], 0 offen offset:{T*64+hh*16}')
    stamp(1)
    stamp_flush(2, 1)
    a.lab('K3_END')
    a('s_endpgm')

hdr = '''; GQA block: 3-kernel version
; @launch kernel=p1_kernel grid=(256,1,1) block=(512,1,1) lds=163840
; @launch kernel=p2_kernel grid=(256,1,1) block=(512,1,1) lds=131072
; @launch kernel=p3_kernel grid=(256,1,1) block=(64,1,1) lds=0
.amdgcn_target "amdgcn-amd-amdhsa--gfx950"
.text
'''
k1(); k2(); k3()
def kd(name, vg):
    return f'''.amdhsa_kernel {name}
  .amdhsa_next_free_vgpr {vg}
  .amdhsa_next_free_sgpr 102
  .amdhsa_accum_offset {vg}
  .amdhsa_group_segment_fixed_size 0
  .amdhsa_kernarg_size 64
  .amdhsa_user_sgpr_count 2
  .amdhsa_user_sgpr_kernarg_segment_ptr 1
  .amdhsa_system_sgpr_workgroup_id_x 1
.end_amdhsa_kernel
'''
tail = '.section .rodata,"a"\n.p2align 6\n' + kd('p1_kernel', 256) + '.p2align 6\n' + kd('p2_kernel', 256) + '.p2align 6\n' + kd('p3_kernel', 256)
sys.stdout.write(hdr + a.txt() + tail)
```

```python
import sys, math, struct

def opt(name, default):
    if name in sys.argv:
        return int(sys.argv[sys.argv.index(name) + 1])
    return default
STAMPS = '--stamps' in sys.argv
NSTAMP = 12
STAMP_OFF = 0x8000000
KVTHR = opt('--kvthr', 16)
SPIN = 1 << 22

KNAME = 'standalone__gqa_block_cached__near_ridge_kernel'

class A:
    def __init__(s): s.l = []; s.n = 0
    def __call__(s, x): s.l.append('  ' + x)
    def lab(s, x): s.l.append(x + ':')
    def c(s, x): s.l.append('  ; ' + x)
    def uniq(s, p): s.n += 1; return f'{p}_{s.n}'
    def txt(s): return '\n'.join(s.l) + '\n'
a = A()

S_X, S_K, S_V, S_WQ, S_WO, S_OUT, S_DBG, S_WS = 16, 18, 20, 22, 24, 26, 28, 30
S_WAVE, S_HG, S_BP, S_M, S_H, S_ROT, S_T0, S_T1, S_T2, S_T3 = 3, 4, 5, 6, 7, 8, 9, 10, 11, 12
S_BPL = 13
S_SPIN = 14
S_FL = 15
SRD0, SRD1 = 32, 36
S_CNT, S_SLOT, S_KC = 40, 41, 42
S_C, S_NC = 43, 44
S_NONCE = 46
S_PO = 48
S_ST = 64
SRD2 = 88

LDS_K = 98304
LDS_V = 65536
FL = 163840 - 1024
F_XW = FL
F_PROG = FL + 32
F_K = FL + 48
F_V = FL + 52
F_KISS = FL + 56
F_C01 = FL + 64
F_WO = FL + 80
F_NONCE = FL + 112
WOB = [131072, 0, 16384, 32768, 49152, 98304, 114688, 65536]

WS_O = 0
WS_P = 8 << 20
WS_F1 = 16 << 20
WS_F2 = (16 << 20) + 65536
WS_TOTAL = 268435456

def stamp(i):
    if STAMPS: a(f's_memrealtime s[{S_ST+2*i}:{S_ST+2*i+1}]')
def stamp_init():
    if STAMPS:
        for i in range(NSTAMP): a(f's_mov_b64 s[{S_ST+2*i}:{S_ST+2*i+1}], 0')
def stamp_flush():
    if not STAMPS: return
    a('s_waitcnt vmcnt(0) lgkmcnt(0)')
    a(f's_add_u32 s56, s{S_WS}, {STAMP_OFF}')
    a(f's_addc_u32 s57, s{S_WS+1}, 0')
    a('s_and_b32 s57, s57, 0xffff')
    a('s_mov_b32 s58, 0x100000')
    a('s_mov_b32 s59, 0x20000')
    a(f's_lshl_b32 s60, s2, 3')
    a(f's_add_u32 s60, s60, s{S_WAVE}')
    a(f's_mul_i32 s60, s60, {NSTAMP*8}')
    a('s_mov_b64 exec, 1')
    a('v_mov_b32 v250, 0')
    for i in range(NSTAMP):
        a(f'v_mov_b32 v252, s{S_ST+2*i}')
        a(f'v_mov_b32 v253, s{S_ST+2*i+1}')
        a(f'buffer_store_dwordx2 v[252:253], v250, s[56:59], s60 offen offset:{i*8}')
        a('s_nop 1')
    a('s_waitcnt vmcnt(0)')

def endwave():
    stamp_flush()
    a('s_endpgm')

def srd(dst, ptr, off_sgpr, nbytes_total):
    a(f's_add_u32 s{dst}, s{ptr}, s{off_sgpr}')
    a(f's_addc_u32 s{dst+1}, s{ptr+1}, 0')
    a(f's_and_b32 s{dst+1}, s{dst+1}, 0xffff')
    a(f's_sub_u32 s{dst+2}, {nbytes_total}, s{off_sgpr}')
    a(f's_mov_b32 s{dst+3}, 0x20000')

def mfma(d, aa, b, c=None):
    cc = f'v[{d}:{d+15}]' if c is None else c
    a(f'v_mfma_f32_32x32x16_bf16 v[{d}:{d+15}], v[{aa}:{aa+3}], v[{b}:{b+3}], {cc}')

VZ = 31
VONE = 30

def one(x):
    a('s_mov_b64 exec, 1'); a(x); a('s_mov_b64 exec, -1')
def lds_set(addr, vreg=VONE):
    one(f'ds_write_b32 v{VZ}, v{vreg} offset:{addr - FL}')

def spin_guard():
    a(f's_sub_u32 s{S_SPIN}, s{S_SPIN}, 1')
    a('s_cbranch_scc1 L_ABORT')

def wait_word(addr, sleep=1):
    L = a.uniq('WW'); D = a.uniq('WD')
    a.lab(L)
    a(f'ds_read_b32 v28, v{VZ} offset:{addr - FL}')
    a('s_waitcnt lgkmcnt(0)')
    a(f'v_readfirstlane_b32 s{S_T3}, v28')
    a(f's_cmp_lg_u32 s{S_T3}, 0')
    a(f's_cbranch_scc1 {D}')
    if sleep: a(f's_sleep {sleep}')
    spin_guard()
    a(f's_branch {L}')
    a.lab(D)

def wait_prog(n, sleep=1):
    L = a.uniq('WP'); D = a.uniq('WD')
    a.lab(L)
    a(f'ds_read_b128 v[24:27], v{VZ} offset:{F_PROG - FL}')
    a('s_waitcnt lgkmcnt(0)')
    a('v_min_u32 v24, v24, v25')
    a('v_min3_u32 v24, v24, v26, v27')
    a('s_nop 0')
    a(f'v_readfirstlane_b32 s{S_T3}, v24')
    a(f's_cmp_ge_u32 s{S_T3}, {n}')
    a(f's_cbranch_scc1 {D}')
    if sleep: a(f's_sleep {sleep}')
    spin_guard()
    a(f's_branch {L}')
    a.lab(D)

def lane_fields():
    a('v_and_b32 v1, 31, v0')
    a('v_lshrrev_b32 v2, 5, v0')
    a('v_bfe_u32 v3, v0, 2, 2')
    a('v_and_b32 v4, 3, v0')
    a('v_bfe_u32 v5, v0, 4, 1')
    a('v_lshl_or_b32 v6, v5, 2, v4')

def blk_pattern(dst, rowstride_shift):
    a('v_lshrrev_b32 v1, 4, v0')
    a('v_bfe_u32 v2, v0, 2, 2')
    a('v_xor_b32 v2, v2, v1')
    a('v_and_b32 v3, 3, v0')
    a('v_lshlrev_b32 v3, 4, v3')
    a('v_lshl_add_u32 v3, v2, 6, v3')
    a(f'v_lshl_add_u32 v{dst}, v1, {rowstride_shift}, v3')

def wo_setup(srdreg, vdst):
    a(f's_lshl_b32 s{S_T0}, s{S_HG}, 20')
    a(f's_lshl_b32 s{S_T1}, s{S_M}, 7')
    a(f's_add_u32 s{S_T0}, s{S_T0}, s{S_T1}')
    srd(srdreg, S_WO, S_T0, 4 << 20)
    a('v_lshrrev_b32 v1, 3, v0')
    a('v_bfe_u32 v2, v0, 2, 1')
    a('v_bfe_u32 v3, v0, 4, 1')
    a('v_xor_b32 v2, v2, v3')
    a('v_and_b32 v3, 3, v0')
    a('v_lshlrev_b32 v3, 4, v3')
    a('v_lshl_add_u32 v3, v2, 6, v3')
    a(f'v_lshl_add_u32 v{vdst}, v1, 10, v3')

def wo_issue(n, srdreg, vaddr):
    a(f's_add_u32 s{S_T0}, s{S_M}, {n}')
    a(f's_and_b32 s{S_T0}, s{S_T0}, 7')
    a(f's_lshl_b32 s{S_T0}, s{S_T0}, 17')
    for q in range(16):
        a(f's_mov_b32 m0, {WOB[n] + q*1024}')
        if q: a(f's_add_u32 s{S_T0}, s{S_T0}, 8192')
        else: a('s_nop 0')
        a(f'buffer_load_dwordx4 v{vaddr}, s[{srdreg}:{srdreg+3}], s{S_T0} offen lds')

a.l.append('.globl ' + KNAME)
a.l.append('.p2align 8')
a.l.append(f'.type {KNAME},@function')
a.lab(KNAME)
a('s_cmp_ge_u32 s2, 256')
a('s_cbranch_scc1 L_END')
a('s_load_dwordx16 s[16:31], s[0:1], 0')
stamp_init()
stamp(0)
a('v_lshrrev_b32 v1, 6, v0')
a('v_and_b32 v0, 63, v0')
a(f'v_readfirstlane_b32 s{S_WAVE}, v1')
a(f'v_mov_b32 v{VZ}, {FL}')
a(f'v_mov_b32 v{VONE}, 1')
a(f's_mov_b32 s{S_SPIN}, {SPIN}')
a(f's_cmp_lg_u32 s{S_WAVE}, 0')
a('s_cbranch_scc1 L_NOINIT')
a(f'v_lshl_add_u32 v2, v0, 2, v{VZ}')
a('v_mov_b32 v3, 0')
a('ds_write_b32 v2, v3')
a.lab('L_NOINIT')
a(f's_and_b32 s{S_HG}, s2, 3')
a(f's_bfe_u32 s{S_T0}, s2, 0x10002')
a(f's_bfe_u32 s{S_M}, s2, 0x30003')
a(f's_lshr_b32 s{S_BPL}, s2, 6')
a(f's_lshl_b32 s{S_BP}, s{S_T0}, 2')
a(f's_add_u32 s{S_BP}, s{S_BP}, s{S_BPL}')
a(f's_lshl_b32 s{S_H}, s{S_HG}, 3')
a(f's_add_u32 s{S_H}, s{S_H}, s{S_M}')
a(f's_lshl_b32 s{S_ROT}, s{S_BPL}, 1')
a(f's_add_u32 s{S_ROT}, s{S_ROT}, s{S_M}')
a(f's_and_b32 s{S_ROT}, s{S_ROT}, 7')
a('s_waitcnt lgkmcnt(0)')
a('s_barrier')
a(f's_cmp_lt_u32 s{S_WAVE}, 4')
a('s_cbranch_scc1 L_COMPUTE')
a(f's_cmp_eq_u32 s{S_WAVE}, 6')
a('s_cbranch_scc1 L_LK')
a(f's_cmp_eq_u32 s{S_WAVE}, 7')
a('s_cbranch_scc1 L_LV')

a(f's_lshl_b32 s{S_T0}, s{S_BP}, 17')
srd(SRD0, S_X, S_T0, 1 << 20)
a(f's_lshl_b32 s{S_T0}, s{S_H}, 8')
srd(SRD1, S_WQ, S_T0, 4 << 20)
for par in range(2):
    a('v_lshrrev_b32 v1, 4, v0')
    a(f'v_add_u32 v1, {4*par}, v1')
    a('v_and_b32 v2, 7, v0')
    a('v_xor_b32 v1, v1, v2')
    a('v_lshlrev_b32 v1, 4, v1')
    a('v_lshrrev_b32 v2, 3, v0')
    a(f'v_lshl_add_u32 v{8+par}, v2, 10, v1')
blk_pattern(10, 13)
a(f's_and_b32 s{S_CNT}, s{S_WAVE}, 1')
a(f's_lshl_b32 s{S_SLOT}, s{S_CNT}, 15')
a.lab('L_CL_LOOP')
a(f's_cmp_lt_u32 s{S_CNT}, 3')
a('s_cbranch_scc1 L_CL_GO')
L = 'L_CL_WAIT'
a.lab(L)
a(f'ds_read_b128 v[24:27], v{VZ} offset:{F_PROG - FL}')
a('s_waitcnt lgkmcnt(0)')
a('v_min_u32 v24, v24, v25')
a('v_min3_u32 v24, v24, v26, v27')
a('s_nop 0')
a(f'v_readfirstlane_b32 s{S_T3}, v24')
a(f's_add_u32 s{S_T3}, s{S_T3}, 2')
a(f's_cmp_ge_u32 s{S_T3}, s{S_CNT}')
a('s_cbranch_scc1 L_CL_GO')
a('s_sleep 1')
spin_guard()
a(f's_branch {L}')
a.lab('L_CL_GO')
a(f's_add_u32 s{S_KC}, s{S_ROT}, s{S_CNT}')
a(f's_and_b32 s{S_KC}, s{S_KC}, 7')
a(f's_lshl_b32 s{S_T0}, s{S_KC}, 7')
a(f's_lshl_b32 s{S_T2}, s{S_KC}, 19')
a(f's_mov_b32 s{S_T1}, s{S_SLOT}')
for q in range(16):
    a(f's_mov_b32 m0, s{S_T1}')
    a(f's_add_u32 s{S_T1}, s{S_T1}, 16384')
    a(f'buffer_load_dwordx4 v{8+(q&1)}, s[{SRD0}:{SRD0+3}], s{S_T0} offen lds')
    a(f's_mov_b32 m0, s{S_T1}')
    a(f's_sub_u32 s{S_T1}, s{S_T1}, 15360')
    a(f'buffer_load_dwordx4 v10, s[{SRD1}:{SRD1+3}], s{S_T2} offen lds')
    a(f's_add_u32 s{S_T0}, s{S_T0}, 8192')
    a(f's_add_u32 s{S_T2}, s{S_T2}, 32768')
a(f's_and_b32 s{S_T0}, s{S_WAVE}, 1')
a(f's_lshl_b32 s{S_T0}, s{S_T0}, 2')
a(f'v_add_u32 v24, s{S_T0}, v{VZ}')
one(f'ds_write_b32 v24, v{VONE} offset:{F_C01 - FL}')
a(f's_lshl_b32 s{S_T0}, s{S_CNT}, 2')
a(f'v_add_u32 v24, s{S_T0}, v{VZ}')
a('s_waitcnt vmcnt(0)')
one(f'ds_write_b32 v24, v{VONE} offset:{F_XW - FL}')
if STAMPS:
    for i in range(4):
        Ls = a.uniq('ST')
        a(f's_lshr_b32 s{S_T0}, s{S_CNT}, 1')
        a(f's_cmp_lg_u32 s{S_T0}, {i}')
        a(f's_cbranch_scc1 {Ls}')
        stamp(1 + i)
        a.lab(Ls)
a(f's_add_u32 s{S_SLOT}, s{S_SLOT}, 65536')
a(f's_cmp_ge_u32 s{S_SLOT}, 98304')
a(f's_cselect_b32 s{S_T0}, 98304, 0')
a(f's_sub_u32 s{S_SLOT}, s{S_SLOT}, s{S_T0}')
a(f's_add_u32 s{S_CNT}, s{S_CNT}, 2')
a(f's_cmp_lt_u32 s{S_CNT}, 8')
a('s_cbranch_scc1 L_CL_LOOP')
wo_setup(SRD0, 8)
a(f's_cmp_eq_u32 s{S_WAVE}, 5')
a('s_cbranch_scc1 L_CL5')
wait_prog(7)
wo_issue(1, SRD0, 8); wo_issue(2, SRD0, 8)
a('s_waitcnt vmcnt(16)'); lds_set(F_WO + 4)
a('s_waitcnt vmcnt(0)'); lds_set(F_WO + 8)
stamp(5)
endwave()
a.lab('L_CL5')
wait_prog(8)
wo_issue(3, SRD0, 8); wo_issue(4, SRD0, 8)
a('s_waitcnt vmcnt(16)'); lds_set(F_WO + 12)
a('s_waitcnt vmcnt(0)'); lds_set(F_WO + 16)
stamp(5)
endwave()

def kv_base(ptr):
    a(f's_lshl_b32 s{S_T0}, s{S_BP}, 6')
    a(f's_add_u32 s{S_T0}, s{S_T0}, s{S_H}')
    a(f's_lshl_b32 s{S_T0}, s{S_T0}, 14')
    srd(SRD0, ptr, S_T0, 8 << 20)

a.lab('L_LK')
kv_base(S_K)
for qq in range(4):
    a('v_lshrrev_b32 v1, 4, v0')
    a(f'v_add_u32 v2, {4*qq}, v1')
    a('v_and_b32 v3, 15, v0')
    a('v_xor_b32 v2, v2, v3')
    a('v_lshlrev_b32 v2, 4, v2')
    a(f'v_lshl_add_u32 v{8+qq}, v1, 8, v2')
wo_setup(SRD1, 12)
wait_word(F_C01); wait_word(F_C01 + 4)
stamp(1)
n = 0
for bb in range(2):
    for q in range(16):
        if n >= KVTHR: a(f's_waitcnt vmcnt({KVTHR-1})')
        a(f's_mov_b32 m0, {LDS_K + bb*16384 + q*1024}')
        a(f's_mov_b32 s{S_T0}, {bb*524288 + q*1024}')
        a(f'buffer_load_dwordx4 v{8+(q&3)}, s[{SRD0}:{SRD0+3}], s{S_T0} offen lds')
        n += 1
lds_set(F_KISS)
stamp(2)
a('s_waitcnt vmcnt(0)')
lds_set(F_K)
stamp(3)
wait_word(F_V)
wo_issue(0, SRD1, 12)
a('s_waitcnt vmcnt(0)'); lds_set(F_WO + 0)
stamp(4)
wait_prog(9)
wo_issue(5, SRD1, 12); wo_issue(6, SRD1, 12)
a('s_waitcnt vmcnt(16)'); lds_set(F_WO + 20)
a('s_waitcnt vmcnt(0)'); lds_set(F_WO + 24)
stamp(5)
endwave()

a.lab('L_LV')
a(f's_memrealtime s[{S_NONCE}:{S_NONCE+1}]')
a(f's_mov_b32 s{SRD1}, s{S_DBG}')
a(f's_and_b32 s{SRD1+1}, s{S_DBG+1}, 0xffff')
a(f's_mov_b32 s{SRD1+2}, 256')
a(f's_mov_b32 s{SRD1+3}, 0x20000')
a('s_waitcnt lgkmcnt(0)')
a(f's_or_b32 s{S_NONCE}, s{S_NONCE}, 1')
a(f'v_mov_b32 v16, s{S_NONCE}')
a(f'v_mov_b32 v17, s{S_NONCE+1}')
a('v_mov_b32 v18, 0')
a('v_mov_b32 v19, 0')
a('v_mov_b32 v20, 0')
a('s_mov_b64 exec, 1')
a(f'buffer_atomic_cmpswap_x2 v[16:19], v20, s[{SRD1}:{SRD1+3}], 0 offen sc0 sc1')
a('s_mov_b64 exec, -1')
kv_base(S_V)
blk_pattern(8, 8)
a(f'v_add_u32 v8, {LDS_V}, v8')
a('v_lshlrev_b32 v9, 4, v0')
a('s_waitcnt vmcnt(0)')
a(f'v_readfirstlane_b32 s{S_T0}, v16')
a(f'v_readfirstlane_b32 s{S_T1}, v17')
a(f's_or_b32 s{S_T2}, s{S_T0}, s{S_T1}')
a(f's_cmp_eq_u32 s{S_T2}, 0')
a(f's_cselect_b32 s{S_NONCE}, s{S_NONCE}, s{S_T0}')
a(f's_cselect_b32 s{S_NONCE+1}, s{S_NONCE+1}, s{S_T1}')
a(f'v_mov_b32 v16, s{S_NONCE}')
a(f'v_mov_b32 v17, s{S_NONCE+1}')
one(f'ds_write_b64 v{VZ}, v[16:17] offset:{F_NONCE - FL}')
stamp(1)
wait_word(F_KISS)
stamp(2)
VR = 64
for i in range(32):
    bb, q = divmod(i, 16)
    if i >= KVTHR: a(f's_waitcnt vmcnt({KVTHR-1})')
    if q % 4 == 0: a(f's_mov_b32 s{S_T0}, {bb*524288 + q*1024}')
    a(f'buffer_load_dwordx4 v[{VR+4*i}:{VR+4*i+3}], v9, s[{SRD0}:{SRD0+3}], s{S_T0} offen offset:{(q%4)*1024}')
stamp(3)
wait_prog(6)
for i in range(32):
    a(f's_waitcnt vmcnt({min(31-i, 63)})')
    a(f'ds_write_b128 v8, v[{VR+4*i}:{VR+4*i+3}] offset:{i*1024}')
a('s_waitcnt lgkmcnt(0)')
lds_set(F_V)
stamp(4)
wo_setup(SRD1, 12)
wait_prog(10)
wo_issue(7, SRD1, 12)
a('s_waitcnt vmcnt(0)'); lds_set(F_WO + 28)
stamp(5)
endwave()

a.lab('L_COMPUTE')
lane_fields()
ACC = 64; AB = [128, 144]; BB = [160, 164]
XB = 8; WB = 12; XC = 16; WC = 20
VPROG = 29
VFLG = 27
a(f's_lshl_b32 s{S_T0}, s{S_WAVE}, 12')
a('v_bfe_u32 v7, v1, 1, 3')
a('v_xor_b32 v7, v7, v2')
a('v_lshlrev_b32 v7, 4, v7')
a('v_lshl_add_u32 v7, v1, 7, v7')
a(f'v_add_u32 v{XB}, s{S_T0}, v7')
for st in range(1, 4):
    a(f'v_xor_b32 v{XB+st}, {st<<5}, v{XB}')
a('v_and_b32 v24, 4, v6')
a('v_and_b32 v25, 1, v6')
a('v_lshl_or_b32 v24, v25, 1, v24')
a('v_bfe_u32 v25, v6, 1, 1')
a('v_or_b32 v24, v24, v25')
a('v_lshl_add_u32 v25, v2, 3, v3')
a('v_lshlrev_b32 v25, 8, v25')
a('v_lshl_add_u32 v25, v24, 3, v25')
a('v_add_u32 v25, 16384, v25')
for T in range(4):
    a(f'v_xor_b32 v26, {T}, v3')
    a(f'v_lshl_add_u32 v{WB+T}, v26, 6, v25')
for i in range(64): a(f'v_mov_b32 v{ACC+i}, 0')
for i in range(4):
    a(f'v_mov_b32 v{XC+i}, v{XB+i}')
    a(f'v_mov_b32 v{WC+i}, v{WB+i}')
a(f's_lshl_b32 s{S_T0}, s{S_WAVE}, 2')
a(f's_add_u32 s{S_T0}, s{S_T0}, {F_PROG}')
a(f'v_mov_b32 v{VPROG}, s{S_T0}')
a(f'v_mov_b32 v{VFLG}, {F_XW + 4}')
KA = 32; VA = 40; WA = 44
a(f's_lshr_b32 s{S_T0}, s{S_WAVE}, 1')
a(f's_lshl_b32 s{S_T0}, s{S_T0}, 14')
a(f's_add_u32 s{S_T1}, s{S_T0}, {LDS_K}')
a(f's_add_u32 s{S_T2}, s{S_T0}, {LDS_V}')
a('v_and_b32 v24, 15, v1')
a('v_xor_b32 v24, v24, v2')
a('v_lshlrev_b32 v24, 4, v24')
a('v_lshl_add_u32 v24, v1, 8, v24')
a(f'v_add_u32 v{KA}, s{S_T1}, v24')
for st in range(1, 8): a(f'v_xor_b32 v{KA+st}, {st<<5}, v{KA}')
a('v_lshl_add_u32 v25, v2, 2, v3')
a('v_lshlrev_b32 v25, 8, v25')
a('v_lshl_add_u32 v25, v6, 3, v25')
a(f'v_add_u32 v25, s{S_T2}, v25')
for T in range(4):
    a(f'v_xor_b32 v26, {T}, v3')
    a(f'v_lshl_add_u32 v{VA+T}, v26, 6, v25')
a('v_and_b32 v24, 1, v6')
a('v_lshrrev_b32 v25, 1, v6')
a('v_lshl_or_b32 v24, v24, 2, v25')
a('v_lshl_add_u32 v25, v2, 2, v3')
a('v_lshlrev_b32 v25, 7, v25')
a('v_lshl_add_u32 v25, v24, 3, v25')
a('v_lshrrev_b32 v26, 1, v3')
for T in range(2):
    a(f'v_xor_b32 v24, {T}, v26')
    a(f'v_lshl_add_u32 v{WA+T}, v24, 6, v25')
a(f's_mov_b32 s{S_SLOT}, 0')
a(f's_mov_b32 s{S_CNT}, 0')
c = math.log2(math.e) / math.sqrt(128.0)
cb = struct.unpack('<I', struct.pack('<f', c))[0]
a(f's_mov_b32 s{S_C}, {hex(cb)}')
a(f's_mov_b32 s{S_NC}, {hex(cb ^ 0x80000000)}')

def rdB(st, buf): a(f'ds_read_b128 v[{BB[buf]}:{BB[buf]+3}], v{XC+st}')
def rdA(st, T, buf):
    for u in range(2):
        d = AB[buf] + 4*T + 2*u
        a(f'ds_read_b64_tr_b16 v[{d}:{d+1}], v{WC+T} offset:{st*4096+u*1024}')
wait_word(F_XW, sleep=1)
stamp(1)
rdB(0, 0)
for T in range(4): rdA(0, T, 0)
a.lab('L_QLOOP')
for st in range(3):
    buf = st & 1; nb = buf ^ 1
    extra = 0
    a('s_waitcnt lgkmcnt(6)')
    mfma(ACC + 0, AB[buf] + 0, BB[buf])
    rdB(st + 1, nb); rdA(st + 1, 0, nb); rdA(st + 1, 1, nb)
    a('s_waitcnt lgkmcnt(9)')
    mfma(ACC + 16, AB[buf] + 4, BB[buf])
    rdA(st + 1, 2, nb); rdA(st + 1, 3, nb)
    a('s_waitcnt lgkmcnt(11)')
    mfma(ACC + 32, AB[buf] + 8, BB[buf])
    a('s_waitcnt lgkmcnt(9)')
    mfma(ACC + 48, AB[buf] + 12, BB[buf])
a('s_waitcnt lgkmcnt(6)')
mfma(ACC + 0, AB[1] + 0, BB[1])
a(f'ds_read_b32 v28, v{VFLG}')
a(f's_add_u32 s{S_SLOT}, s{S_SLOT}, 32768')
a(f's_cmp_eq_u32 s{S_SLOT}, 98304')
a(f's_cselect_b32 s{S_SLOT}, 0, s{S_SLOT}')
a(f's_add_u32 s{S_CNT}, s{S_CNT}, 1')
a(f'v_mov_b32 v26, s{S_CNT}')
a('s_waitcnt lgkmcnt(5)')
mfma(ACC + 16, AB[1] + 4, BB[1])
for i in range(4):
    a(f'v_add_u32 v{XC+i}, s{S_SLOT}, v{XB+i}')
    a(f'v_add_u32 v{WC+i}, s{S_SLOT}, v{WB+i}')
a('s_waitcnt lgkmcnt(0)')
one(f'ds_write_b32 v{VPROG}, v26')
a(f's_cmp_eq_u32 s{S_CNT}, 8')
a('s_cbranch_scc1 L_QDONE')
a(f'v_readfirstlane_b32 s{S_T3}, v28')
a(f's_cmp_lg_u32 s{S_T3}, 0')
a('s_cbranch_scc1 L_QGO')
a.lab('L_QSPIN')
a(f'ds_read_b32 v28, v{VFLG}')
a('s_waitcnt lgkmcnt(0)')
a(f'v_readfirstlane_b32 s{S_T3}, v28')
a(f's_cmp_lg_u32 s{S_T3}, 0')
a('s_cbranch_scc1 L_QGO')
spin_guard()
a('s_branch L_QSPIN')
a.lab('L_QGO')
a(f'v_add_u32 v{VFLG}, 4, v{VFLG}')
rdB(0, 0); rdA(0, 0, 0); rdA(0, 1, 0)
mfma(ACC + 32, AB[1] + 8, BB[1])
rdA(0, 2, 0); rdA(0, 3, 0)
mfma(ACC + 48, AB[1] + 12, BB[1])
a('s_branch L_QLOOP')
a.lab('L_QDONE')
mfma(ACC + 32, AB[1] + 8, BB[1])
mfma(ACC + 48, AB[1] + 12, BB[1])
stamp(2)
QF = 168; SA = 200; PF = 232
wait_word(F_K, sleep=0)
stamp(3)
KF = 128
def rdK(st, Tk, slot): a(f'ds_read_b128 v[{KF+4*slot}:{KF+4*slot+3}], v{KA+st} offset:{Tk*8192}')
for st in range(4):
    for Tk in range(2): rdK(st, Tk, 2*st + Tk)
a('s_nop 3')
for T in range(4):
    for j in range(8):
        a(f'v_cvt_pk_bf16_f32 v{QF+8*T+j}, v{ACC+16*T+2*j}, v{ACC+16*T+2*j+1}')
a('s_nop 1')
for st in range(8):
    for Tk in range(2):
        idx = 2*st + Tk
        slot = idx % 8
        a(f's_waitcnt lgkmcnt({7 if st < 4 else 15 - idx})')
        mfma(SA + 16*Tk, KF + 4*slot, QF + 4*st, '0' if st == 0 else None)
        if st < 4: rdK(st + 4, Tk, slot)
a('v_mov_b32 v26, 9')
one(f'ds_write_b32 v{VPROG}, v26')
stamp(4)
a('s_nop 7')
a('s_nop 1')
a(f'v_max3_f32 v24, v{SA}, v{SA+1}, v{SA+2}')
a(f'v_max3_f32 v25, v{SA+3}, v{SA+4}, v{SA+5}')
k = 6; tog = 0
while k < 32:
    d = 24 + tog
    a(f'v_max3_f32 v{d}, v{d}, v{SA+k}, v{SA+k+1}')
    k += 2; tog ^= 1
a('v_max_f32 v24, v24, v25')
a('v_mov_b32 v25, v24')
a('s_nop 1')
a('v_permlane32_swap_b32 v25, v24')
a('s_nop 1')
a('v_max_f32 v24, v24, v25')
a(f'v_mul_f32 v24, s{S_NC}, v24')
for i in range(32): a(f'v_fma_f32 v{SA+i}, v{SA+i}, s{S_C}, v24')
for i in range(32): a(f'v_exp_f32 v{SA+i}, v{SA+i}')
a('s_nop 0')
a(f'v_add_f32 v25, v{SA}, v{SA+1}')
a(f'v_add_f32 v26, v{SA+2}, v{SA+3}')
for i in range(4, 32, 2):
    a(f'v_add_f32 v25, v25, v{SA+i}')
    a(f'v_add_f32 v26, v26, v{SA+i+1}')
a('v_add_f32 v25, v25, v26')
a('v_mov_b32 v26, v25')
a('s_nop 1')
a('v_permlane32_swap_b32 v26, v25')
a('s_nop 1')
a('v_add_f32 v25, v25, v26')
a('v_rcp_f32 v25, v25')
a('s_nop 0')
for i in range(32): a(f'v_mul_f32 v{SA+i}, v{SA+i}, v25')
for j in range(16): a(f'v_cvt_pk_bf16_f32 v{PF+j}, v{SA+2*j}, v{SA+2*j+1}')
wait_word(F_V, sleep=0)
stamp(5)
def rdV(ks, T, buf):
    for u in range(2):
        d = AB[buf] + 4*T + 2*u
        a(f'ds_read_b64_tr_b16 v[{d}:{d+1}], v{VA+T} offset:{ks*4096+u*2048}')
for T in range(4): rdV(0, T, 0)
for ks in range(4):
    buf = ks & 1
    for T in range(4):
        a(f's_waitcnt lgkmcnt({6 if ks < 3 else 6 - 2*T})')
        mfma(ACC + 16*T, AB[buf] + 4*T, PF + 4*ks, '0' if ks == 0 else None)
        if ks < 3: rdV(ks + 1, T, buf ^ 1)
a('v_mov_b32 v26, 10')
one(f'ds_write_b32 v{VPROG}, v26')
a(f'ds_read_b64 v[24:25], v{VZ} offset:{F_NONCE - FL}')
a(f's_lshl_b32 s{S_T0}, s{S_BP}, 2')
a(f's_add_u32 s{S_T0}, s{S_T0}, s{S_WAVE}')
a(f's_lshl_b32 s{S_T0}, s{S_T0}, 5')
a(f's_lshl_b32 s{S_T1}, s{S_HG}, 3')
a(f's_add_u32 s{S_T0}, s{S_T0}, s{S_T1}')
a(f's_lshl_b32 s{S_T0}, s{S_T0}, 13')
srd(SRD0, S_WS, S_T0, 8 << 20)
for n in range(8):
    a(f's_add_u32 s{S_PO+n}, s{S_M}, {n}')
    a(f's_and_b32 s{S_PO+n}, s{S_PO+n}, 7')
    a(f's_lshl_b32 s{S_PO+n}, s{S_PO+n}, 13')
a('v_lshlrev_b32 v7, 4, v0')
a('v_add_u32 v12, 4096, v7')
for T in range(4):
    for tp in range(2):
        f = 2*T + tp
        d = QF + 4*f
        for j in range(4):
            a(f'v_cvt_pk_bf16_f32 v{d+j}, v{ACC+16*T+8*tp+2*j}, v{ACC+16*T+8*tp+2*j+1}')
        va = 7 if f < 4 else 12
        a(f'buffer_store_dwordx4 v[{d}:{d+3}], v{va}, s[{SRD0}:{SRD0+3}], s{S_PO} offen offset:{(f%4)*1024} sc1')
stamp(6)
a('s_waitcnt lgkmcnt(0)')
a(f'v_readfirstlane_b32 s{S_NONCE}, v24')
a(f'v_readfirstlane_b32 s{S_NONCE+1}, v25')
a(f's_cmp_lg_u32 s{S_NONCE}, 0')
a('s_cbranch_scc1 L_NOK')
a.lab('L_NSPIN')
a(f'ds_read_b64 v[24:25], v{VZ} offset:{F_NONCE - FL}')
a('s_waitcnt lgkmcnt(0)')
a(f'v_readfirstlane_b32 s{S_NONCE}, v24')
a(f'v_readfirstlane_b32 s{S_NONCE+1}, v25')
a(f's_cmp_lg_u32 s{S_NONCE}, 0')
a('s_cbranch_scc1 L_NOK')
spin_guard()
a('s_branch L_NSPIN')
a.lab('L_NOK')
a(f's_lshl_b32 s{S_T0}, s{S_BP}, 2')
a(f's_add_u32 s{S_T0}, s{S_T0}, s{S_HG}')
a(f's_lshl_b32 s{S_T0}, s{S_T0}, 2')
a(f's_add_u32 s{S_T0}, s{S_T0}, s{S_WAVE}')
a(f's_lshl_b32 s{S_T0}, s{S_T0}, 7')
a(f's_add_u32 s{S_T0}, s{S_T0}, {WS_F1}')
srd(SRD1, S_WS, S_T0, WS_TOTAL)
a(f's_lshl_b32 s{S_T1}, s{S_M}, 3')
a(f'v_mov_b32 v13, s{S_T1}')
a('v_and_b32 v14, 7, v0')
a('v_lshlrev_b32 v14, 3, v14')
a(f'v_mov_b32 v16, s{S_NONCE}')
a(f'v_mov_b32 v17, s{S_NONCE+1}')

ACC2 = 32 + 0
a(f'v_mov_b32 v8, v{WA}')
a(f'v_mov_b32 v9, v{WA+1}')
WA2 = 8
A2 = [128, 136, 144, 152]
def ring(i):
    i %= 28
    return 64 + 4*i if i < 16 else 200 + 4*(i - 16)
def rdA2(n, ks):
    g = n*8 + ks
    buf = g % 4
    for T in range(2):
        for u in range(2):
            d = A2[buf] + 4*T + 2*u
            off = WOB[n] % 65536 + ks*2048 + u*1024
            base = 18 + 2*(WOB[n] // 65536) + T
            a(f'ds_read_b64_tr_b16 v[{d}:{d+1}], v{base} offset:{off}')
for hi in range(3):
    for T in range(2):
        a(f'v_add_u32 v{18+2*hi+T}, {hi*65536}, v{WA2+T}')
def ldB(i):
    n = 1 + i // 8; ks = i % 8
    d = ring(i)
    va = 7 if ks < 4 else 12
    a(f'buffer_load_dwordx4 v[{d}:{d+3}], v{va}, s[{SRD0}:{SRD0+3}], s{S_PO+n} offen offset:{(ks%4)*1024} sc1')
PD = 3
wait_word(F_WO, sleep=0)
stamp(7)
for g in range(PD): rdA2(0, g)
for ks in range(8):
    rem = min(PD - 1, 7 - ks)
    a(f's_waitcnt lgkmcnt({4*rem})')
    mfma(ACC2, A2[ks % 4], QF + 4*ks, '0' if ks == 0 else None)
    if ks + PD < 8: rdA2(0, ks + PD)
    mfma(ACC2 + 16, A2[ks % 4] + 4, QF + 4*ks, '0' if ks == 0 else None)
a('s_waitcnt vmcnt(0)')
a('s_mov_b64 exec, 1')
a(f'buffer_store_dwordx2 v[16:17], v13, s[{SRD1}:{SRD1+3}], 0 offen sc1')
a('s_mov_b64 exec, -1')
stamp(8)
a.lab('L_P1')
a(f'buffer_load_dwordx2 v[24:25], v14, s[{SRD1}:{SRD1+3}], 0 offen sc1')
a('s_waitcnt vmcnt(0)')
a(f'v_cmp_eq_u64 vcc, s[{S_NONCE}:{S_NONCE+1}], v[24:25]')
a('s_cmp_eq_u64 vcc, -1')
a('s_cbranch_scc1 L_P1D')
spin_guard()
a('s_branch L_P1')
a.lab('L_P1D')
stamp(9)
for i in range(28): ldB(i)
for n in range(1, 8):
    wait_word(F_WO + 4*n, sleep=0)
    for g in range(PD): rdA2(n, g)
    for ks in range(8):
        i = (n - 1)*8 + ks
        rem = min(PD - 1, 7 - ks)
        vm = 27 if i < 28 else 55 - i
        a(f's_waitcnt vmcnt({vm}) lgkmcnt({4*rem})')
        mfma(ACC2, A2[(n*8 + ks) % 4], ring(i))
        if ks + PD < 8: rdA2(n, ks + PD)
        mfma(ACC2 + 16, A2[(n*8 + ks) % 4] + 4, ring(i))
        if i + 28 < 56: ldB(i + 28)
stamp(10)
a(f's_lshl_b32 s{S_T0}, s{S_BP}, 3')
a(f's_add_u32 s{S_T0}, s{S_T0}, s{S_M}')
a(f's_lshl_b32 s{S_T0}, s{S_T0}, 2')
a(f's_add_u32 s{S_T0}, s{S_T0}, s{S_WAVE}')
a(f's_lshl_b32 s{S_T1}, s{S_T0}, 7')
a(f's_add_u32 s{S_T1}, s{S_T1}, {WS_F2}')
srd(SRD1, S_WS, S_T1, WS_TOTAL)
a(f's_lshl_b32 s{S_T0}, s{S_T0}, 15')
a(f's_add_u32 s{S_T0}, s{S_T0}, {WS_P}')
srd(SRD0, S_WS, S_T0, 16 << 20)
a(f's_cmp_eq_u32 s{S_WAVE}, s{S_HG}')
a('s_cbranch_scc1 L_RED')
a(f's_lshl_b32 s{S_T2}, s{S_HG}, 13')
a(f's_lshl_b32 s{S_T1}, s{S_HG}, 3')
a(f'v_mov_b32 v13, s{S_T1}')
for g in range(8):
    d = ACC2 + 4*g
    va = 7 if g < 4 else 12
    a(f'buffer_store_dwordx4 v[{d}:{d+3}], v{va}, s[{SRD0}:{SRD0+3}], s{S_T2} offen offset:{(g%4)*1024} sc1')
a('s_waitcnt vmcnt(0)')
a('s_mov_b64 exec, 1')
a(f'buffer_store_dwordx2 v[16:17], v13, s[{SRD1}:{SRD1+3}], 0 offen sc1')
a('s_mov_b64 exec, -1')
stamp(11)
endwave()
a.lab('L_RED')
a('v_and_b32 v14, 3, v0')
a(f's_xor_b32 s{S_T1}, s{S_HG}, 1')
a(f'v_mov_b32 v15, s{S_T1}')
a(f'v_cmp_eq_u32 vcc, s{S_HG}, v14')
a('s_nop 1')
a('v_cndmask_b32 v14, v14, v15, vcc')
a('v_lshlrev_b32 v14, 3, v14')
a(f's_lshl_b32 s{S_T0}, s{S_BP}, 2')
a(f's_add_u32 s{S_T0}, s{S_T0}, s{S_WAVE}')
a(f's_lshl_b32 s{S_T0}, s{S_T0}, 15')
a(f's_lshl_b32 s{S_T1}, s{S_M}, 7')
a(f's_add_u32 s{S_T0}, s{S_T0}, s{S_T1}')
srd(SRD2, S_OUT, S_T0, 1 << 20)
a('v_lshlrev_b32 v15, 10, v1')
a('v_lshl_add_u32 v15, v2, 5, v15')
for j in range(1, 4):
    a(f's_add_u32 s{S_PO+j}, s{S_HG}, {j}')
    a(f's_and_b32 s{S_PO+j}, s{S_PO+j}, 3')
    a(f's_lshl_b32 s{S_PO+j}, s{S_PO+j}, 13')
a.lab('L_P2')
a(f'buffer_load_dwordx2 v[24:25], v14, s[{SRD1}:{SRD1+3}], 0 offen sc1')
a('s_waitcnt vmcnt(0)')
a(f'v_cmp_eq_u64 vcc, s[{S_NONCE}:{S_NONCE+1}], v[24:25]')
a('s_cmp_eq_u64 vcc, -1')
a('s_cbranch_scc1 L_P2D')
spin_guard()
a('s_branch L_P2')
a.lab('L_P2D')
for j in range(1, 4):
    for g in range(8):
        d = 64 + 32*(j-1) + 4*g
        va = 7 if g < 4 else 12
        a(f'buffer_load_dwordx4 v[{d}:{d+3}], v{va}, s[{SRD0}:{SRD0+3}], s{S_PO+j} offen offset:{(g%4)*1024} sc1')
for j in range(1, 4):
    for g in range(8):
        a(f's_waitcnt vmcnt({23 - ((j-1)*8 + g)})')
        for r in range(4):
            a(f'v_add_f32 v{ACC2+4*g+r}, v{ACC2+4*g+r}, v{64+32*(j-1)+4*g+r}')
for j in range(16): a(f'v_cvt_pk_bf16_f32 v{64+j}, v{ACC2+2*j}, v{ACC2+2*j+1}')
for T in range(2):
    for hh in range(2):
        d = 64 + 8*T + 4*hh
        a(f'buffer_store_dwordx4 v[{d}:{d+3}], v15, s[{SRD2}:{SRD2+3}], 0 offen offset:{T*64+hh*16}')
stamp(11)
endwave()
a.lab('L_ABORT')
a.lab('L_END')
a('s_endpgm')

hdr = f'''; GQA block fused persistent kernel
; @launch grid=(256,1,1) block=(512,1,1) lds=163840
.amdgcn_target "amdgcn-amd-amdhsa--gfx950"
.text
'''
tail = f'''.section .rodata,"a"
.p2align 6
.amdhsa_kernel {KNAME}
  .amdhsa_next_free_vgpr 256
  .amdhsa_next_free_sgpr 102
  .amdhsa_accum_offset 256
  .amdhsa_group_segment_fixed_size 0
  .amdhsa_kernarg_size 64
  .amdhsa_user_sgpr_count 2
  .amdhsa_user_sgpr_kernarg_segment_ptr 1
  .amdhsa_system_sgpr_workgroup_id_x 1
.end_amdhsa_kernel
'''
sys.stdout.write(hdr + a.txt() + tail)
```

```python
import sys, math, struct

def opt(name, default):
    if name in sys.argv:
        return int(sys.argv[sys.argv.index(name) + 1])
    return default
STAMPS = '--stamps' in sys.argv
NSTAMP = 12
STAMP_OFF = 0x8000000
KGATE = opt('--kgate', 5)
VGATE = opt('--vgate', 7)
CPF = opt('--cpf', 1)
ROT = opt('--rot', 1)
NFAST = opt('--nfast', 6)
FASTOK = opt('--fast', 1)
PSLEEP = opt('--psleep', 0)
RD = opt('--rd', 12)
SPIN = 1 << 22
NOGATE = '--nogate' in sys.argv
ONLY = opt('--only', 0)
NODMA = '--nodma' in sys.argv

KNAME = 'standalone__gqa_block_cached__near_ridge_kernel'

class A:
    def __init__(s): s.l = []; s.n = 0; s.keep = False
    def __call__(s, x):
        if NODMA and x.startswith('buffer_load_dwordx4') and not s.keep: return
        s.l.append('  ' + x)
    def lab(s, x): s.l.append(x + ':')
    def uniq(s, p): s.n += 1; return f'{p}_{s.n}'
    def txt(s): return '\n'.join(s.l) + '\n'
a = A()

S_X, S_K, S_V, S_WQ, S_WO, S_OUT, S_DBG, S_WS = 16, 18, 20, 22, 24, 26, 28, 30
S_WAVE, S_HG, S_BP, S_M, S_H, S_ROT, S_T0, S_T1, S_T2, S_T3 = 3, 4, 5, 6, 7, 8, 9, 10, 11, 12
S_BPL = 13
S_SPIN = 14
SRD0, SRD1 = 32, 36
S_CNT, S_SLOT, S_KC = 40, 41, 42
S_C, S_NC = 43, 44
S_PLO, S_PHI = 43, 44
S_PAR = 45
S_NONCE = 46
S_PO = 48
S_GSTEP, S_CSH, S_LB = 48, 49, 50
S_NA, S_LA, S_GA, S_NB, S_LBB, S_GB = 48, 49, 50, 51, 52, 53
S_ST = 64
SRD2 = 88
S_PC = 92

LDS_K = 0
LDS_V = 32768
FL = 163840 - 1024
F_XW = FL
F_PROG = FL + 64
F_K = FL + 80
F_V = FL + 88
F_VISS = FL + 200
F_CISS = FL + 96
F_WO = FL + 160
F_NONCE = FL + 192
WOB = [131072, 65536, 81920, 98304, 114688, 0, 16384, 32768]
WOG = [0, 7, 7, 8, 8, 9, 9, 10]

WS_P = 8 << 20
WS_F1 = 16 << 20
WS_F2 = (16 << 20) + 131072
WS_TOTAL = 268435456

def stamp(i):
    if STAMPS: a(('s_memtime' if '--cyc' in sys.argv else 's_memrealtime') + f' s[{S_ST+2*i}:{S_ST+2*i+1}]')
def stamp_init():
    if STAMPS:
        for i in range(NSTAMP): a(f's_mov_b64 s[{S_ST+2*i}:{S_ST+2*i+1}], 0')
def endwave():
    if STAMPS: a('s_branch L_FLUSH')
    else: a('s_endpgm')
def stamp_flush_code():
    if not STAMPS: return
    a.lab('L_FLUSH')
    a('s_waitcnt vmcnt(0) lgkmcnt(0)')
    a(f's_add_u32 s56, s{S_WS}, {STAMP_OFF}')
    a(f's_addc_u32 s57, s{S_WS+1}, 0')
    a('s_and_b32 s57, s57, 0xffff')
    a('s_mov_b32 s58, 0x100000')
    a('s_mov_b32 s59, 0x20000')
    a(f's_lshl_b32 s60, s2, 3')
    a(f's_add_u32 s60, s60, s{S_WAVE}')
    a(f's_mul_i32 s60, s60, {NSTAMP*8}')
    a('s_mov_b64 exec, 1')
    a('v_mov_b32 v2, 0')
    for i in range(NSTAMP):
        a(f'v_mov_b32 v4, s{S_ST+2*i}')
        a(f'v_mov_b32 v5, s{S_ST+2*i+1}')
        a(f'buffer_store_dwordx2 v[4:5], v2, s[56:59], s60 offen offset:{i*8}')
        a('s_nop 1')
    a('s_waitcnt vmcnt(0)')
    a('s_endpgm')

def srd(dst, ptr, off_sgpr, nbytes_total):
    a(f's_add_u32 s{dst}, s{ptr}, s{off_sgpr}')
    a(f's_addc_u32 s{dst+1}, s{ptr+1}, 0')
    a(f's_and_b32 s{dst+1}, s{dst+1}, 0xffff')
    a(f's_sub_u32 s{dst+2}, {nbytes_total}, s{off_sgpr}')
    a(f's_mov_b32 s{dst+3}, 0x20000')

def mfma(d, aa, b, c=None):
    cc = f'v[{d}:{d+15}]' if c is None else c
    a(f'v_mfma_f32_32x32x16_bf16 v[{d}:{d+15}], v[{aa}:{aa+3}], v[{b}:{b+3}], {cc}')

VZ = 31
VONE = 30
def one(x):
    a('s_mov_b64 exec, 1'); a(x); a('s_mov_b64 exec, -1')
def lds_set(addr, vreg=VONE):
    one(f'ds_write_b32 v{VZ}, v{vreg} offset:{addr - FL}')
def spin_guard():
    a(f's_sub_u32 s{S_SPIN}, s{S_SPIN}, 1')
    a('s_cbranch_scc1 L_ABORT')
def wait_word(addr, sleep=1, vb=VZ):
    L = a.uniq('WW'); D = a.uniq('WD')
    a.lab(L)
    a(f'ds_read_b32 v28, v{vb} offset:{addr - FL}')
    a('s_waitcnt lgkmcnt(0)')
    a(f'v_readfirstlane_b32 s{S_T3}, v28')
    a(f's_cmp_lg_u32 s{S_T3}, 0')
    a(f's_cbranch_scc1 {D}')
    if sleep: a(f's_sleep {sleep}')
    spin_guard()
    a(f's_branch {L}')
    a.lab(D)
def wait_pair(addr, sleep=1):
    L = a.uniq('WW'); D = a.uniq('WD')
    a.lab(L)
    a(f'ds_read_b64 v[28:29], v{VZ} offset:{addr - FL}')
    a('s_waitcnt lgkmcnt(0)')
    a('v_and_b32 v28, v28, v29')
    a('s_nop 0')
    a(f'v_readfirstlane_b32 s{S_T3}, v28')
    a(f's_cmp_lg_u32 s{S_T3}, 0')
    a(f's_cbranch_scc1 {D}')
    if sleep: a(f's_sleep {sleep}')
    spin_guard()
    a(f's_branch {L}')
    a.lab(D)
def wait_prog(n, sleep=1):
    L = a.uniq('WP'); D = a.uniq('WD')
    a.lab(L)
    a(f'ds_read_b128 v[24:27], v{VZ} offset:{F_PROG - FL}')
    a('s_waitcnt lgkmcnt(0)')
    a('v_min_u32 v24, v24, v25')
    a('v_min3_u32 v24, v24, v26, v27')
    a('s_nop 0')
    a(f'v_readfirstlane_b32 s{S_T3}, v24')
    a(f's_cmp_ge_u32 s{S_T3}, {n}')
    a(f's_cbranch_scc1 {D}')
    if sleep: a(f's_sleep {sleep}')
    spin_guard()
    a(f's_branch {L}')
    a.lab(D)

WAD = 16
OUTB = 32
def writer_addr(ccbits, tiles_per_step):
    a(f'v_and_b32 v1, {(1<<ccbits)-1}, v0')
    a(f'v_lshrrev_b32 v2, {ccbits}, v0')
    a('v_lshrrev_b32 v3, 2, v1')
    a('v_lshrrev_b32 v4, 1, v2')
    a(f'v_mul_u32_u24 v4, {tiles_per_step}, v4')
    a('v_add_u32 v4, v4, v3')
    a('v_and_b32 v5, 1, v2')
    a('v_and_b32 v6, 2, v1')
    a('v_lshl_or_b32 v5, v5, 2, v6')
    a('v_and_b32 v6, 1, v1')
    a('v_lshlrev_b32 v6, 2, v6')
    a('v_xor_b32 v6, v6, v5')
    a('v_and_b32 v3, 1, v3')
    a('v_xor_b32 v6, v6, v3')
    a('v_lshlrev_b32 v6, 4, v6')
    a('v_lshl_add_u32 v6, v5, 7, v6')
    a(f'v_lshl_add_u32 v{WAD}, v4, 10, v6')
    for j in range(1, 8):
        a(f'v_xor_b32 v{WAD+j}, {((j&3)<<4) ^ ((j>>2)*144)}, v{WAD}')
    a(f's_mov_b32 s{S_PLO}, 0x05040100')
    a(f's_mov_b32 s{S_PHI}, 0x07060302')
def transpose_dump(inb, addr_regs, off):
    for j in range(8):
        sel = S_PHI if (j & 1) else S_PLO
        for p in range(4):
            a(f'v_perm_b32 v{OUTB+4*j+p}, v{inb+4*(2*p+1)+(j>>1)}, v{inb+4*(2*p)+(j>>1)}, s{sel}')
        a(f'ds_write_b128 v{addr_regs+j}, v[{OUTB+4*j}:{OUTB+4*j+3}] offset:{off}')
def goto_wo(na, nb):
    a(f's_mov_b32 s{S_NA}, {na}'); a(f's_mov_b32 s{S_LA}, {WOB[na]}'); a(f's_mov_b32 s{S_GA}, {WOG[na]}')
    a(f's_mov_b32 s{S_NB}, {nb}'); a(f's_mov_b32 s{S_LBB}, {WOB[nb]}'); a(f's_mov_b32 s{S_GB}, {WOG[nb]}')
    a('s_branch L_WO')

a.l.append('.globl ' + KNAME)
a.l.append('.p2align 8')
a.l.append(f'.type {KNAME},@function')
a.lab(KNAME)
a('s_cmp_ge_u32 s2, 256')
a('s_cbranch_scc1 L_END')
a('s_load_dwordx16 s[16:31], s[0:1], 0')
a(f's_getpc_b64 s[{S_PC}:{S_PC+1}]')
stamp_init()
stamp(0)
if CPF:
    a(f's_bfe_u32 s{S_T0}, s2, 0x30003')
    a(f's_lshl_b32 s{S_T0}, s{S_T0}, 12')
    a(f'v_lshl_add_u32 v1, v0, 4, s{S_T0}')
    a('v_cmp_gt_u32 vcc, CODE_BYTES, v1')
    a('v_cmp_gt_u32 s[56:57], 0x100, v0') if False else None
    a('s_and_saveexec_b64 s[56:57], vcc')
    a('s_cbranch_execz L_NOCPF')
    a('v_cmp_gt_u32 vcc, 0x100, v0')
    a('s_and_b64 exec, exec, vcc')
    a('s_cbranch_execz L_NOCPF')
    a(f'global_load_dwordx4 v[252:255], v1, s[{S_PC}:{S_PC+1}]')
    a.lab('L_NOCPF')
    a('s_mov_b64 exec, -1')
a('v_lshrrev_b32 v1, 6, v0')
a('v_and_b32 v0, 63, v0')
a(f'v_readfirstlane_b32 s{S_WAVE}, v1')
a(f'v_mov_b32 v{VZ}, {FL}')
a(f'v_mov_b32 v{VONE}, 1')
a(f's_mov_b32 s{S_SPIN}, {SPIN}')
a(f's_and_b32 s{S_HG}, s2, 3')
a(f's_bfe_u32 s{S_T0}, s2, 0x10002')
a(f's_bfe_u32 s{S_M}, s2, 0x30003')
a(f's_lshr_b32 s{S_BPL}, s2, 6')
a(f's_lshl_b32 s{S_BP}, s{S_T0}, 2')
a(f's_add_u32 s{S_BP}, s{S_BP}, s{S_BPL}')
a(f's_lshl_b32 s{S_H}, s{S_HG}, 3')
a(f's_add_u32 s{S_H}, s{S_H}, s{S_M}')
a(f's_and_b32 s{S_T0}, s{S_WAVE}, 6')
a(f's_cmp_lg_u32 s{S_T0}, 4')
a('s_cbranch_scc1 L_OTHER')
if ROT == 8:
    a(f's_lshl_b32 s{S_ROT}, s{S_BPL}, 1')
    a(f's_add_u32 s{S_ROT}, s{S_ROT}, s{S_M}')
    a(f's_and_b32 s{S_ROT}, s{S_ROT}, 7')
else:
    a(f's_add_u32 s{S_ROT}, s{S_BPL}, s{S_M}')
    a(f's_and_b32 s{S_ROT}, s{S_ROT}, {ROT-1}')
    a(f's_mul_i32 s{S_ROT}, s{S_ROT}, {8//ROT}')
a(f's_and_b32 s{S_PAR}, s{S_WAVE}, 1')
a('v_lshrrev_b32 v1, 4, v0')
a(f's_cmp_eq_u32 s{S_PAR}, 1')
a('s_cbranch_scc1 L_SETW')
a('v_and_b32 v2, 7, v0')
a('v_xor_b32 v2, v2, v1')
a('v_lshlrev_b32 v2, 4, v2')
a('v_lshrrev_b32 v3, 3, v0')
a('v_lshl_add_u32 v8, v3, 10, v2')
a('v_xor_b32 v9, 64, v8')
a('v_add_u32 v10, 14336, v8')
a('v_add_u32 v11, 21504, v9')
a('v_add_u32 v9, 7168, v9')
a(f's_mov_b32 s{S_GSTEP}, 32768')
a(f's_mov_b32 s{S_CSH}, 7')
a(f's_mov_b32 s{S_LB}, 0')
a(f's_lshl_b32 s{S_T0}, s{S_BP}, 17')
a('s_waitcnt lgkmcnt(0)')
srd(SRD0, S_X, S_T0, 1 << 20)
a('s_branch L_CLGO')
a.lab('L_SETW')
a('v_bfe_u32 v2, v0, 2, 2')
a('v_xor_b32 v2, v2, v1')
a('v_and_b32 v3, 3, v0')
a('v_lshlrev_b32 v3, 4, v3')
a('v_lshl_add_u32 v3, v2, 6, v3')
a('v_lshl_add_u32 v8, v1, 13, v3')
for q in range(1, 4): a(f'v_add_u32 v{8+q}, {q*31744}, v8')
a(f's_mov_b32 s{S_GSTEP}, 131072')
a(f's_mov_b32 s{S_CSH}, 19')
a(f's_mov_b32 s{S_LB}, 16384')
a(f's_lshl_b32 s{S_T0}, s{S_H}, 8')
a('s_waitcnt lgkmcnt(0)')
srd(SRD0, S_WQ, S_T0, 4 << 20)
a.lab('L_CLGO')
if ONLY:
    a(f's_cmp_eq_u32 s{S_PAR}, {ONLY-1}')
    a('s_cbranch_scc1 L_KEEP')
    a('s_barrier')
    endwave()
    a.lab('L_KEEP')
a(f's_lshl_b32 s{S_T0}, s{S_PAR}, 2')
a(f'v_add_u32 v12, s{S_T0}, v{VZ}')
a(f's_mov_b32 s{S_CNT}, 0')
a.lab('L_CL')
a(f's_cmp_lt_u32 s{S_CNT}, 2')
a('s_cbranch_scc1 L_CL_ISS')
a(f's_cmp_lt_u32 s{S_CNT}, 9')
a('s_cbranch_scc1 L_CL_W16')
a('s_waitcnt vmcnt(0)')
a.lab('L_CL_W16')
a('s_waitcnt vmcnt(16)')
one(f'ds_write_b32 v12, v{VONE} offset:{F_XW - FL - 16 + 0}') if False else None
a('v_subrev_u32 v13, 16, v12')
one(f'ds_write_b32 v13, v{VONE} offset:{F_XW - FL}')
if STAMPS:
    for i in range(8 if NOGATE else 4):
        Ls = a.uniq('ST')
        a(f's_cmp_lg_u32 s{S_CNT}, {2 + i if NOGATE else 2 + 2*i}')
        a(f's_cbranch_scc1 {Ls}')
        stamp(1 + i)
        a.lab(Ls)
a(f's_cmp_ge_u32 s{S_CNT}, 8')
a('s_cbranch_scc1 L_CL_NEXT')
a(f's_cmp_lt_u32 s{S_CNT}, 4')
a('s_cbranch_scc1 L_CL_ISS')
a(f's_sub_u32 s{S_T2}, s{S_CNT}, 3')
if not NOGATE: wait_prog(f's{S_T2}')
a.lab('L_CL_ISS')
a(f's_add_u32 s{S_KC}, s{S_ROT}, s{S_CNT}')
a(f's_and_b32 s{S_KC}, s{S_KC}, 7')
a(f's_lshl_b32 s{S_T0}, s{S_KC}, s{S_CSH}')
a(f's_and_b32 s{S_T1}, s{S_CNT}, 3')
a(f's_lshl_b32 s{S_T1}, s{S_T1}, 15')
a(f's_add_u32 s{S_T1}, s{S_T1}, s{S_LB}')
for qq in range(4):
    a(f's_mov_b32 m0, s{S_T1}')
    a(f's_add_u32 s{S_T1}, s{S_T1}, 4096')
    for q in range(4):
        a(f'buffer_load_dwordx4 v{8+q}, s[{SRD0}:{SRD0+3}], s{S_T0} offen offset:{q*1024} lds')
    a(f's_add_u32 s{S_T0}, s{S_T0}, s{S_GSTEP}')
a(f's_cmp_lg_u32 s{S_CNT}, 0')
a('s_cbranch_scc1 L_CL_NOBAR')
a('s_barrier')
a.lab('L_CL_NOBAR')
one(f'ds_write_b32 v12, v{VONE} offset:{F_CISS - FL}')
a.lab('L_CL_NEXT')
a('v_add_u32 v12, 8, v12')
a(f's_add_u32 s{S_CNT}, s{S_CNT}, 1')
a(f's_cmp_lt_u32 s{S_CNT}, 10')
a('s_cbranch_scc1 L_CL')
if NOGATE: endwave()
a(f's_cmp_eq_u32 s{S_PAR}, 1')
a('s_cbranch_scc1 L_CL5')
goto_wo(0, 1)
a.lab('L_CL5')
goto_wo(2, 3)

a.lab('L_OTHER')
a(f's_cmp_lg_u32 s{S_WAVE}, 0')
a('s_cbranch_scc1 L_NOINIT')
a(f'v_lshl_add_u32 v2, v0, 2, v{VZ}')
a('v_mov_b32 v3, 0')
a('ds_write_b32 v2, v3')
a.lab('L_NOINIT')
a('s_waitcnt lgkmcnt(0)')
a('s_barrier')
if NOGATE: endwave()
a(f's_cmp_ge_u32 s{S_WAVE}, 4')
a('s_cbranch_scc1 L_KV')
KVCODE_MARK = len(a.l)
a.lab('L_COMPUTE')
a('v_and_b32 v1, 31, v0')
a('v_lshrrev_b32 v2, 5, v0')
ACC = 64; AB = [128, 144]; BB = [160, 164]
XB = 8; WB = 12; XH = 16; WH = 20
RB = 42
VPROG = 44; VFLG = 45; VCNT = 46
a(f's_lshl_b32 s{S_T0}, s{S_WAVE}, 12')
a('v_bfe_u32 v7, v1, 1, 3')
a('v_xor_b32 v7, v7, v2')
a('v_lshlrev_b32 v7, 4, v7')
a('v_lshl_add_u32 v7, v1, 7, v7')
a(f'v_add_u32 v{XB}, s{S_T0}, v7')
for st in range(1, 4): a(f'v_xor_b32 v{XB+st}, {st<<5}, v{XB}')
a('v_bfe_u32 v3, v0, 2, 2')
a('v_bfe_u32 v5, v0, 4, 1')
a('v_and_b32 v24, 1, v0')
a('v_bfe_u32 v25, v0, 1, 1')
a('v_lshl_or_b32 v24, v24, 1, v25')
a('v_lshl_or_b32 v24, v5, 2, v24')
a('v_lshl_add_u32 v25, v2, 3, v3')
a('v_lshlrev_b32 v25, 8, v25')
a('v_lshl_add_u32 v25, v24, 3, v25')
a('v_add_u32 v25, 16384, v25')
for T in range(4):
    a(f'v_xor_b32 v26, {T}, v3')
    a(f'v_lshl_add_u32 v{WB+T}, v26, 6, v25')
for i in range(4):
    a(f'v_add_u32 v{XH+i}, 65536, v{XB+i}')
    a(f'v_add_u32 v{WH+i}, 65536, v{WB+i}')
a('v_lshrrev_b32 v3, 3, v0')
a('v_and_b32 v4, 7, v0')
a('v_xor_b32 v4, v4, v3')
a('v_lshlrev_b32 v4, 4, v4')
a(f'v_lshl_add_u32 v{RB}, v3, 7, v4')
a(f'v_xor_b32 v{RB+1}, 16, v{RB}')
for i in range(64): a(f'v_mov_b32 v{ACC+i}, 0')
a(f's_lshl_b32 s{S_T0}, s{S_WAVE}, 2')
a(f's_add_u32 s{S_T0}, s{S_T0}, {F_PROG}')
a(f'v_mov_b32 v{VPROG}, s{S_T0}')
a(f'v_mov_b32 v{VFLG}, {F_XW}')
a(f'v_mov_b32 v{VCNT}, 0')
VKF = 47
a(f's_lshr_b32 s{S_T0}, s{S_WAVE}, 1')
a(f's_lshl_b32 s{S_T0}, s{S_T0}, 2')
a(f'v_add_u32 v{VKF}, s{S_T0}, v{VZ}')
KA = 32; VA = 40
a(f's_lshr_b32 s{S_T0}, s{S_WAVE}, 1')
a(f's_lshl_b32 s{S_T0}, s{S_T0}, 14')
a(f's_add_u32 s{S_T1}, s{S_T0}, {LDS_K}')
a(f's_add_u32 s{S_T2}, s{S_T0}, {LDS_V}')
a('v_and_b32 v24, 0x13, v1')
a('v_bfe_u32 v25, v1, 2, 1')
a('v_lshl_or_b32 v24, v25, 3, v24')
a('v_bfe_u32 v25, v1, 3, 1')
a('v_lshl_or_b32 v24, v25, 2, v24')
a('v_and_b32 v25, 15, v24')
a('v_xor_b32 v25, v25, v2')
a('v_lshlrev_b32 v25, 4, v25')
a('v_lshl_add_u32 v25, v24, 8, v25')
a(f'v_add_u32 v{KA}, s{S_T1}, v25')
for st in range(1, 8): a(f'v_xor_b32 v{KA+st}, {st<<5}, v{KA}')
for i in range(2): a(f'v_add_u32 v{VA+i}, s{S_T2}, v{RB+i}')
a(f's_mov_b32 s{S_CNT}, 0')
c = math.log2(math.e) / math.sqrt(128.0)
cb = struct.unpack('<I', struct.pack('<f', c))[0]
a(f's_mov_b32 s{S_C}, {hex(cb)}')
a(f's_mov_b32 s{S_NC}, {hex(cb ^ 0x80000000)}')
a(f's_lshl_b32 s{S_T0}, s{S_BP}, 2')
a(f's_add_u32 s{S_T0}, s{S_T0}, s{S_WAVE}')
a(f's_lshl_b32 s{S_T0}, s{S_T0}, 5')
a(f's_lshl_b32 s{S_T1}, s{S_HG}, 3')
a(f's_add_u32 s{S_T0}, s{S_T0}, s{S_T1}')
a(f's_lshl_b32 s{S_T0}, s{S_T0}, 13')
srd(SRD0, S_WS, S_T0, 8 << 20)
for n in range(8):
    a(f's_add_u32 s{S_PO+n}, s{S_M}, {n}')
    a(f's_and_b32 s{S_PO+n}, s{S_PO+n}, 7')
    a(f's_lshl_b32 s{S_PO+n}, s{S_PO+n}, 13')
a(f's_lshl_b32 s{S_T0}, s{S_BP}, 2')
a(f's_add_u32 s{S_T0}, s{S_T0}, s{S_HG}')
a(f's_lshl_b32 s{S_T0}, s{S_T0}, 2')
a(f's_add_u32 s{S_T0}, s{S_T0}, s{S_WAVE}')
a(f's_lshl_b32 s{S_T0}, s{S_T0}, 8')
a(f's_add_u32 s{S_T0}, s{S_T0}, {WS_F1}')
srd(SRD1, S_WS, S_T0, WS_TOTAL)
VL0 = 3; VL1 = 4; VOWN = 5; VPOLL = 6
a(f'v_lshlrev_b32 v{VL0}, 4, v0')
a(f'v_add_u32 v{VL1}, 4096, v{VL0}')
a(f's_lshl_b32 s{S_T1}, s{S_M}, 3')
a(f'v_mov_b32 v{VOWN}, s{S_T1}')
a(f'v_and_b32 v{VPOLL}, 7, v0')
a(f'v_lshlrev_b32 v{VPOLL}, 3, v{VPOLL}')
a('v_bfe_u32 v7, v0, 3, 1')
a(f'v_lshl_add_u32 v{VPOLL}, v7, 7, v{VPOLL}')

def rdB(sl, st, buf):
    base = (XH if sl >= 2 else XB) + st
    a(f'ds_read_b128 v[{BB[buf]}:{BB[buf]+3}], v{base} offset:{(sl&1)*32768}')
def rdA(sl, st, T, buf, us=(0, 1)):
    base = (WH if sl >= 2 else WB) + T
    for u in us:
        d = AB[buf] + 4*T + 2*u
        a(f'ds_read_b64_tr_b16 v[{d}:{d+1}], v{base} offset:{(sl&1)*32768 + st*4096 + u*1024}')
wait_pair(F_XW, sleep=1)
stamp(1)
rdB(0, 0, 0)
for T in range(4): rdA(0, 0, T, 0)
a.lab('L_QLOOP')
for sl in range(4):
    for st in range(4):
        buf = st & 1; nb = buf ^ 1
        nsl, nst = (sl, st + 1) if st < 3 else ((sl + 1) & 3, 0)
        e1 = 1 if st in (2, 3) else 0
        a(f's_waitcnt lgkmcnt({4 + e1})')
        mfma(ACC + 0, AB[buf] + 0, BB[buf])
        rdB(nsl, nst, nb); rdA(nsl, nst, 0, nb)
        mfma(ACC + 16, AB[buf] + 4, BB[buf])
        rdA(nsl, nst, 1, nb); rdA(nsl, nst, 2, nb, (0,))
        a(f's_waitcnt lgkmcnt({7 if st == 3 else 6})')
        mfma(ACC + 32, AB[buf] + 8, BB[buf])
        rdA(nsl, nst, 2, nb, (1,)); rdA(nsl, nst, 3, nb)
        if st == 1:
            a(f'ds_read_b64 v[28:29], v{VFLG} offset:{8*(sl+1)}')
            a(f'v_add_u32 v{VCNT}, 1, v{VCNT}')
        if st == 2:
            a('v_and_b32 v28, v28, v29')
            one(f'ds_write_b32 v{VPROG}, v{VCNT}')
            a(f'v_readfirstlane_b32 s{S_T3}, v28')
            if sl == 3:
                a(f's_cmp_eq_u32 s{S_CNT}, 1')
                a('s_cbranch_scc1 L_QTAIL')
            Lg = a.uniq('QG'); Ls = a.uniq('QS')
            a(f's_cmp_lg_u32 s{S_T3}, 0')
            a(f's_cbranch_scc1 {Lg}')
            a.lab(Ls)
            a(f'ds_read_b64 v[28:29], v{VFLG} offset:{8*(sl+1)}')
            a('s_waitcnt lgkmcnt(0)')
            a('v_and_b32 v28, v28, v29')
            a('s_nop 0')
            a(f'v_readfirstlane_b32 s{S_T3}, v28')
            a(f's_cmp_lg_u32 s{S_T3}, 0')
            a(f's_cbranch_scc1 {Lg}')
            spin_guard()
            a(f's_branch {Ls}')
            a.lab(Lg)
        mfma(ACC + 48, AB[buf] + 12, BB[buf])
a(f'v_add_u32 v{VFLG}, 32, v{VFLG}')
a(f's_mov_b32 s{S_CNT}, 1')
a('s_branch L_QLOOP')
a.lab('L_QTAIL')
mfma(ACC + 48, AB[0] + 12, BB[0])
a(f'ds_read_b32 v28, v{VKF} offset:{F_K - FL}')
a('s_waitcnt lgkmcnt(6)')
mfma(ACC + 0, AB[1] + 0, BB[1])
mfma(ACC + 16, AB[1] + 4, BB[1])
a('s_waitcnt lgkmcnt(0)')
mfma(ACC + 32, AB[1] + 8, BB[1])
a(f'v_readfirstlane_b32 s{S_T3}, v28')
mfma(ACC + 48, AB[1] + 12, BB[1])
stamp(2)
QF = 168; SA = 200; PF = 232
a(f's_cmp_lg_u32 s{S_T3}, 0')
a('s_cbranch_scc1 L_KOK')
wait_word(F_K, sleep=0, vb=VKF)
a.lab('L_KOK')
stamp(3)
KF = 128
KF2 = 232
def kreg(idx):
    return (232 + 4*idx) if idx < 4 else KF + 4*((idx - 4) % 8)
def rdK(idx):
    st, Tk = divmod(idx, 2)
    d = kreg(idx)
    a(f'ds_read_b128 v[{d}:{d+3}], v{KA+st} offset:{Tk*8192}')
def cvtQ(f):
    T, tp = divmod(f, 2)
    for j in range(4):
        a(f'v_cvt_pk_bf16_f32 v{QF+4*f+j}, v{ACC+16*T+8*tp+2*j}, v{ACC+16*T+8*tp+2*j+1}')
for idx in range(12): rdK(idx)
cvtQ(0); cvtQ(1)
for idx in range(16):
    st, Tk = divmod(idx, 2)
    issued = 12 + max(0, min(4, idx - 4))
    a(f's_waitcnt lgkmcnt({issued - idx - 1})')
    mfma(SA + 16*Tk, kreg(idx), QF + 4*st, '0' if st == 0 else None)
    if 4 <= idx < 8: rdK(idx + 8)
    if Tk == 0 and st + 2 < 8: cvtQ(st + 2)
    if idx == 7:
        a(f'v_mov_b32 v{VCNT}, 9')
        one(f'ds_write_b32 v{VPROG}, v{VCNT}')
        a(f'ds_read_b32 v28, v{VKF} offset:{F_V - FL}')
stamp(4)
a(f'v_readfirstlane_b32 s{S_T3}, v28')
a(f's_cmp_lg_u32 s{S_T3}, 0')
a('s_cbranch_scc1 L_VOK1')
a(f's_mov_b32 s{S_T2}, 0')
a('s_branch L_VOK2')
a.lab('L_VOK1')
def rdV(ks, T):
    d = KF + 16*(ks & 1) + 4*T
    a(f'ds_read_b128 v[{d}:{d+3}], v{VA+(T&1)} offset:{ks*4096+T*1024}')
for ks in range(2):
    for T in range(4): rdV(ks, T)
a(f's_mov_b32 s{S_T2}, 1')
a.lab('L_VOK2')
a('s_nop 7')
a(f'v_max3_f32 v24, v{SA}, v{SA+1}, v{SA+2}')
a(f'v_max3_f32 v25, v{SA+3}, v{SA+4}, v{SA+5}')
k = 6; tog = 0
while k < 32:
    d = 24 + tog
    a(f'v_max3_f32 v{d}, v{d}, v{SA+k}, v{SA+k+1}')
    k += 2; tog ^= 1
a('v_max_f32 v24, v24, v25')
a('v_mov_b32 v25, v24')
a('s_nop 1')
a('v_permlane32_swap_b32 v25, v24')
a('s_nop 1')
a('v_max_f32 v24, v24, v25')
a(f'v_mul_f32 v24, s{S_NC}, v24')
def sm_ops(ks):
    ops = []
    b = SA + 8*ks
    for i in range(8): ops.append(f'v_fma_f32 v{b+i}, v{b+i}, s{S_C}, v24')
    for i in range(8): ops.append(f'v_exp_f32 v{b+i}, v{b+i}')
    for j in range(4): ops.append(f'v_cvt_pk_bf16_f32 v{PF+4*ks+j}, v{b+2*j}, v{b+2*j+1}')
    return ops
def sum_ops(ks):
    ops = []
    b = SA + 8*ks
    for i in range(0, 8, 2):
        if ks == 0 and i == 0:
            ops.append(f'v_mov_b32 v25, v{b}'); ops.append(f'v_mov_b32 v26, v{b+1}')
        else:
            ops.append(f'v_add_f32 v25, v25, v{b+i}'); ops.append(f'v_add_f32 v26, v26, v{b+i+1}')
    return ops
for o in sm_ops(0): a(o)
a(f's_cmp_eq_u32 s{S_T2}, 1')
a('s_cbranch_scc1 L_VOK3')
wait_word(F_V, sleep=0, vb=VKF)
for ks in range(2):
    for T in range(4): rdV(ks, T)
a.lab('L_VOK3')
stamp(5)
for ks in range(4):
    fill = (sm_ops(ks + 1) if ks < 3 else []) + sum_ops(ks)
    if ks == 3:
        fill += ['v_add_f32 v25, v25, v26', 'v_mov_b32 v26, v25', 's_nop 1', 'v_permlane32_swap_b32 v26, v25', 's_nop 1',
                 'v_add_f32 v25, v25, v26', 'v_rcp_f32 v25, v25']
    per = (len(fill) + 3) // 4
    for T in range(4):
        if ks < 2: cnt = 7
        elif ks == 2: cnt = 7 - T + 2
        else: cnt = 3 - T + 2
        a(f's_waitcnt lgkmcnt({cnt})')
        mfma(ACC + 16*T, KF + 16*(ks & 1) + 4*T, PF + 4*ks, '0' if ks == 0 else None)
        if ks < 2: rdV(ks + 2, T)
        if ks == 1 and T == 3:
            a(f'v_mov_b32 v{VCNT}, 10')
            one(f'ds_write_b32 v{VPROG}, v{VCNT}')
            a(f'ds_read_b64 v[16:17], v{VZ} offset:{F_NONCE - FL}')
        for o in fill[T*per:(T+1)*per]: a(o)
for hi in range(3):
    for T in range(2):
        a(f'v_add_u32 v{8+2*hi+T}, {hi*65536}, v{RB+T}')
a('v_mov_b32 v24, v25')
a.keep = True
for T in range(4):
    for tp in range(2):
        f = 2*T + tp
        d = QF + 4*f
        b = ACC + 16*T + 8*tp
        for j in range(4):
            a(f'v_pk_mul_f32 v[{b+2*j}:{b+2*j+1}], v[{b+2*j}:{b+2*j+1}], v[24:25]')
        for j in range(4):
            a(f'v_cvt_pk_bf16_f32 v{d+j}, v{b+2*j}, v{b+2*j+1}')
        va = VL0 if f < 4 else VL1
        a(f'buffer_store_dwordx4 v[{d}:{d+3}], v{va}, s[{SRD0}:{SRD0+3}], s{S_PO} offen offset:{(f%4)*1024} sc1')
stamp(6)
a('s_waitcnt lgkmcnt(0)')
a.lab('L_NSPIN')
a(f'v_readfirstlane_b32 s{S_NONCE}, v16')
a(f'v_readfirstlane_b32 s{S_NONCE+1}, v17')
a(f's_cmp_lg_u32 s{S_NONCE}, 0')
a('s_cbranch_scc1 L_NOK')
a(f'ds_read_b64 v[16:17], v{VZ} offset:{F_NONCE - FL}')
a('s_waitcnt lgkmcnt(0)')
spin_guard()
a('s_branch L_NSPIN')
a.lab('L_NOK')

ACC2 = 32
NA2 = 4
A2 = [128, 136, 144, 152]
def ring(i):
    i %= 28
    return 64 + 4*i if i < 16 else 200 + 4*(i - 16)
def rdA2(g):
    n, ks = divmod(g, 8)
    buf = g % NA2
    hi = WOB[n] // 65536
    for T in range(2):
        d = A2[buf] + 4*T
        off = WOB[n] % 65536 + ks*2048 + T*1024
        a(f'ds_read_b128 v[{d}:{d+3}], v{8 + 2*hi + T} offset:{off}')
def ldB(i):
    n = 1 + i // 8; ks = i % 8
    d = ring(i)
    va = VL0 if ks < 4 else VL1
    a(f'buffer_load_dwordx4 v[{d}:{d+3}], v{va}, s[{SRD0}:{SRD0+3}], s{S_PO+n} offen offset:{(ks%4)*1024}')
PD = 3
wait_word(F_WO, sleep=0)
for g in range(PD): rdA2(g)
for ks in range(8):
    rem = min(PD - 1, 7 - ks)
    a(f's_waitcnt lgkmcnt({2*rem})')
    mfma(ACC2, A2[ks % NA2], QF + 4*ks, '0' if ks == 0 else None)
    if ks + PD < 8: rdA2(ks + PD)
    mfma(ACC2 + 16, A2[ks % NA2] + 4, QF + 4*ks, '0' if ks == 0 else None)
stamp(7)
a('s_waitcnt vmcnt(0)')
stamp(8)
if FASTOK:
    one(f'buffer_store_dwordx2 v[16:17], v{VOWN}, s[{SRD1}:{SRD1+3}], 0 offen')
    a(f'v_and_b32 v7, 0x7f, v{VPOLL}')
    a(f's_mov_b32 s{S_T1}, {NFAST}')
    a.lab('L_PF')
    a(f'buffer_load_dwordx2 v[24:25], v7, s[{SRD1}:{SRD1+3}], 0 offen sc1')
    a('s_waitcnt vmcnt(0)')
    a(f'v_cmp_eq_u64 vcc, s[{S_NONCE}:{S_NONCE+1}], v[24:25]')
    a('s_cmp_eq_u64 vcc, -1')
    a('s_cbranch_scc1 L_PFOK')
    a(f's_sub_u32 s{S_T1}, s{S_T1}, 1')
    a(f's_cmp_lg_u32 s{S_T1}, 0')
    a('s_cbranch_scc1 L_PF')
one(f'buffer_store_dwordx2 v[16:17], v{VOWN}, s[{SRD1}:{SRD1+3}], 0 offen offset:128 sc1')
a.lab('L_P1')
a(f'buffer_load_dwordx2 v[24:25], v{VPOLL}, s[{SRD1}:{SRD1+3}], 0 offen sc1')
a('s_waitcnt vmcnt(0)')
a(f'v_cmp_eq_u64 vcc, s[{S_NONCE}:{S_NONCE+1}], v[24:25]')
a(f's_lshr_b32 s{S_T0}, vcc_lo, 8')
a(f's_or_b32 s{S_T0}, s{S_T0}, vcc_lo')
a(f's_and_b32 s{S_T0}, s{S_T0}, 0xff')
a(f's_cmp_eq_u32 s{S_T0}, 0xff')
a(f's_mov_b32 s{S_T1}, 0')
a('s_cbranch_scc1 L_P1D')
spin_guard()
a('s_branch L_P1')
a.lab('L_PFOK')
a(f's_mov_b32 s{S_T1}, 1')
a.lab('L_P1D')
a(f's_mov_b32 s{S_SLOT}, s{S_T1}')
stamp(9)
for i in range(RD): ldB(i)
a.lab('L_WOW')
a(f'ds_read_b128 v[24:27], v{VZ} offset:{F_WO - FL}')
a(f'ds_read_b128 v[18:21], v{VZ} offset:{F_WO - FL + 16}')
a('s_waitcnt lgkmcnt(0)')
a('v_min3_u32 v24, v24, v25, v26')
a('v_min3_u32 v18, v18, v19, v20')
a('v_min3_u32 v24, v24, v27, v21')
a('v_min_u32 v24, v24, v18')
a('s_nop 0')
a(f'v_readfirstlane_b32 s{S_T3}, v24')
a(f's_cmp_lg_u32 s{S_T3}, 0')
a('s_cbranch_scc1 L_WOK')
spin_guard()
a('s_branch L_WOW')
a.lab('L_WOK')
for g in range(8, 8 + PD): rdA2(g)
for g in range(8, 64):
    i = g - 8
    rem = min(PD - 1, 63 - g)
    vm = min(RD - 1, 55 - i)
    a(f's_waitcnt vmcnt({vm}) lgkmcnt({2*rem})')
    mfma(ACC2, A2[g % NA2], ring(i))
    if g + PD < 64: rdA2(g + PD)
    mfma(ACC2 + 16, A2[g % NA2] + 4, ring(i))
    if i + RD < 56: ldB(i + RD)
stamp(10)
a(f's_cmp_eq_u32 s{S_SLOT}, 0')
a('s_cbranch_scc1 L_NOOWE')
one(f'buffer_store_dwordx2 v[16:17], v{VOWN}, s[{SRD1}:{SRD1+3}], 0 offen offset:128 sc1')
a.lab('L_NOOWE')
a(f's_lshl_b32 s{S_T0}, s{S_BP}, 3')
a(f's_add_u32 s{S_T0}, s{S_T0}, s{S_M}')
a(f's_lshl_b32 s{S_T0}, s{S_T0}, 2')
a(f's_add_u32 s{S_T0}, s{S_T0}, s{S_WAVE}')
a(f's_lshl_b32 s{S_T1}, s{S_T0}, 7')
a(f's_add_u32 s{S_T1}, s{S_T1}, {WS_F2}')
srd(SRD1, S_WS, S_T1, WS_TOTAL)
a(f's_lshl_b32 s{S_T0}, s{S_T0}, 15')
a(f's_add_u32 s{S_T0}, s{S_T0}, {WS_P}')
srd(SRD0, S_WS, S_T0, 16 << 20)
a(f's_cmp_eq_u32 s{S_WAVE}, s{S_HG}')
a('s_cbranch_scc1 L_RED')
a(f's_lshl_b32 s{S_T2}, s{S_HG}, 13')
a(f's_lshl_b32 s{S_T1}, s{S_HG}, 3')
a(f'v_mov_b32 v{VOWN}, s{S_T1}')
for g in range(8):
    d = ACC2 + 4*g
    va = VL0 if g < 4 else VL1
    a(f'buffer_store_dwordx4 v[{d}:{d+3}], v{va}, s[{SRD0}:{SRD0+3}], s{S_T2} offen offset:{(g%4)*1024} sc1')
a('s_waitcnt vmcnt(0)')
one(f'buffer_store_dwordx2 v[16:17], v{VOWN}, s[{SRD1}:{SRD1+3}], 0 offen sc1')
stamp(11)
endwave()
a.lab('L_RED')
a(f'v_and_b32 v{VPOLL}, 3, v0')
a(f's_xor_b32 s{S_T1}, s{S_HG}, 1')
a(f'v_mov_b32 v15, s{S_T1}')
a(f'v_cmp_eq_u32 vcc, s{S_HG}, v{VPOLL}')
a('s_nop 1')
a(f'v_cndmask_b32 v{VPOLL}, v{VPOLL}, v15, vcc')
a(f'v_lshlrev_b32 v{VPOLL}, 3, v{VPOLL}')
a(f's_lshl_b32 s{S_T0}, s{S_BP}, 2')
a(f's_add_u32 s{S_T0}, s{S_T0}, s{S_WAVE}')
a(f's_lshl_b32 s{S_T0}, s{S_T0}, 15')
a(f's_lshl_b32 s{S_T1}, s{S_M}, 7')
a(f's_add_u32 s{S_T0}, s{S_T0}, s{S_T1}')
srd(SRD2, S_OUT, S_T0, 1 << 20)
a('v_lshlrev_b32 v15, 10, v1')
a('v_lshl_add_u32 v15, v2, 4, v15')
for j in range(1, 4):
    a(f's_add_u32 s{S_PO+j}, s{S_HG}, {j}')
    a(f's_and_b32 s{S_PO+j}, s{S_PO+j}, 3')
    a(f's_lshl_b32 s{S_PO+j}, s{S_PO+j}, 13')
a.lab('L_P2')
a(f'buffer_load_dwordx2 v[24:25], v{VPOLL}, s[{SRD1}:{SRD1+3}], 0 offen sc1')
a('s_waitcnt vmcnt(0)')
a(f'v_cmp_eq_u64 vcc, s[{S_NONCE}:{S_NONCE+1}], v[24:25]')
a('s_cmp_eq_u64 vcc, -1')
a('s_cbranch_scc1 L_P2D')
if PSLEEP: a(f's_sleep {PSLEEP}')
spin_guard()
a('s_branch L_P2')
a.lab('L_P2D')
for j in range(1, 4):
    for g in range(8):
        d = 64 + 32*(j-1) + 4*g
        va = VL0 if g < 4 else VL1
        a(f'buffer_load_dwordx4 v[{d}:{d+3}], v{va}, s[{SRD0}:{SRD0+3}], s{S_PO+j} offen offset:{(g%4)*1024} sc1')
for j in range(1, 4):
    for g in range(8):
        a(f's_waitcnt vmcnt({23 - ((j-1)*8 + g)})')
        for r in range(4):
            a(f'v_add_f32 v{ACC2+4*g+r}, v{ACC2+4*g+r}, v{64+32*(j-1)+4*g+r}')
for j in range(16): a(f'v_cvt_pk_bf16_f32 v{64+j}, v{ACC2+2*j}, v{ACC2+2*j+1}')
for T in range(2):
    for hh in range(2):
        d = 64 + 8*T + 4*hh
        a(f'buffer_store_dwordx4 v[{d}:{d+3}], v15, s[{SRD2}:{SRD2+3}], 0 offen offset:{T*64+hh*32}')
stamp(11)
endwave()
a.keep = False

a.lab('L_KV')
VR = 64
a(f's_and_b32 s{S_PAR}, s{S_WAVE}, 1')
a(f's_lshl_b32 s{S_T0}, s{S_BP}, 1')
a(f's_add_u32 s{S_T0}, s{S_T0}, s{S_PAR}')
a(f's_lshl_b32 s{S_T0}, s{S_T0}, 5')
a(f's_add_u32 s{S_T0}, s{S_T0}, s{S_H}')
a(f's_lshl_b32 s{S_T0}, s{S_T0}, 14')
srd(SRD0, S_K, S_T0, 8 << 20)
srd(SRD2, S_V, S_T0, 8 << 20)
a(f's_mov_b32 s{SRD1}, s{S_DBG}')
a(f's_and_b32 s{SRD1+1}, s{S_DBG+1}, 0xffff')
a(f's_mov_b32 s{SRD1+2}, 256')
a(f's_mov_b32 s{SRD1+3}, 0x20000')
a('v_mov_b32 v15, 0')
a(f's_lshl_b32 s{S_T1}, s2, 1')
a(f's_add_u32 s{S_T1}, s{S_T1}, s{S_PAR}')
a(f's_cmp_lg_u32 s{S_T1}, 1')
a('s_cbranch_scc1 L_LV1')
a(f's_memrealtime s[{S_NONCE}:{S_NONCE+1}]')
a('s_waitcnt lgkmcnt(0)')
a(f's_or_b32 s{S_NONCE}, s{S_NONCE}, 1')
a(f'v_mov_b32 v200, s{S_NONCE}')
a(f'v_mov_b32 v201, s{S_NONCE+1}')
one(f'buffer_store_dwordx2 v[200:201], v15, s[{SRD1}:{SRD1+3}], 0 offen sc1')
a.lab('L_LV1')
a(f's_lshl_b32 s{S_T1}, s{S_PAR}, 14')
for qq in range(4):
    a('v_lshrrev_b32 v1, 4, v0')
    a(f'v_add_u32 v2, {4*qq}, v1')
    a('v_and_b32 v3, 15, v0')
    a('v_xor_b32 v2, v2, v3')
    a('v_lshlrev_b32 v2, 4, v2')
    a(f'v_lshl_add_u32 v{8+qq}, v1, 8, v2')
    a(f'v_add_u32 v{8+qq}, s{S_T1}, v{8+qq}')
a('v_lshlrev_b32 v14, 4, v0')
writer_addr(4, 4)
a('v_lshlrev_b32 v1, 4, v1')
a('v_lshl_add_u32 v12, v2, 11, v1')
for j in range(8): a(f'v_add_u32 v{WAD+j}, s{S_T1}, v{WAD+j}')
a(f's_lshl_b32 s{S_T1}, s{S_PAR}, 2')
a(f'v_add_u32 v13, s{S_T1}, v{VZ}')
wait_pair(F_CISS + 8*KGATE)
a('s_waitcnt vmcnt(0)')
stamp(1)
for q in range(16):
    if q % 4 == 0: a(f's_mov_b32 s{S_T0}, {q*1024}')
    a(f'buffer_load_dwordx4 v[{VR+4*q}:{VR+4*q+3}], v14, s[{SRD0}:{SRD0+3}], s{S_T0} offen offset:{(q%4)*1024}')
if VGATE > KGATE: wait_pair(F_CISS + 8*VGATE)
stamp(2)
for rho in range(2):
    a(f's_mov_b32 s{S_T0}, {rho*8192}')
    for r in range(8):
        d = 128 + 32*rho + 4*r
        a(f'buffer_load_dwordx4 v[{d}:{d+3}], v12, s[{SRD2}:{SRD2+3}], s{S_T0} offen offset:{r*256}')
a(f'buffer_load_dwordx2 v[200:201], v15, s[{SRD1}:{SRD1+3}], 0 offen sc1')
one(f'ds_write_b32 v13, v{VONE} offset:{F_VISS - FL}')
wait_prog(5)
for q in range(16):
    if q % 2 == 0: a(f's_waitcnt vmcnt({17 + 14 - q})')
    a(f'ds_write_b128 v{8+(q&3)}, v[{VR+4*q}:{VR+4*q+3}] offset:{LDS_K + q*1024}')
one(f'ds_write_b32 v13, v{VONE} offset:{F_K - FL}')
stamp(3)
wait_prog(6)
for rho in range(2):
    a(f's_waitcnt vmcnt({1 + 8*(1-rho)})')
    transpose_dump(128 + 32*rho, WAD, LDS_V + rho*8192)
one(f'ds_write_b32 v13, v{VONE} offset:{F_V - FL}')
stamp(4)
a(f's_cmp_eq_u32 s{S_PAR}, 0')
a('s_cbranch_scc1 L_KV6')
a('s_waitcnt vmcnt(0)')
a.lab('L_NCHK')
a(f'v_readfirstlane_b32 s{S_T0}, v200')
a(f's_cmp_lg_u32 s{S_T0}, 0')
a('s_cbranch_scc1 L_NGOT')
a(f'buffer_load_dwordx2 v[200:201], v15, s[{SRD1}:{SRD1+3}], 0 offen sc1')
a('s_waitcnt vmcnt(0)')
spin_guard()
a('s_branch L_NCHK')
a.lab('L_NGOT')
one(f'ds_write_b64 v{VZ}, v[200:201] offset:{F_NONCE - FL}')
goto_wo(6, 7)
a.lab('L_KV6')
a(f's_mov_b32 s{S_NA}, 4'); a(f's_mov_b32 s{S_LA}, {WOB[4]}'); a(f's_mov_b32 s{S_GA}, {WOG[4]}')
a(f's_mov_b32 s{S_NB}, 5'); a(f's_mov_b32 s{S_LBB}, {WOB[5]}'); a(f's_mov_b32 s{S_GB}, {WOG[5]}')
a.lab('L_WO')
a(f's_lshl_b32 s{S_T0}, s{S_HG}, 20')
a(f's_lshl_b32 s{S_T1}, s{S_M}, 7')
a(f's_add_u32 s{S_T0}, s{S_T0}, s{S_T1}')
srd(SRD0, S_WO, S_T0, 4 << 20)
writer_addr(3, 2)
a('v_lshlrev_b32 v1, 4, v1')
a('v_lshl_add_u32 v12, v2, 13, v1')
a('v_add_u32 v13, 4096, v12')
wait_pair(F_VISS)
for pi, sn in enumerate((S_NA, S_NB)):
    a(f's_add_u32 s{S_T0}, s{S_M}, s{sn}')
    a(f's_and_b32 s{S_T0}, s{S_T0}, 7')
    a(f's_lshl_b32 s{S_T0}, s{S_T0}, 17')
    for rho in range(2):
        if rho: a(f's_add_u32 s{S_T0}, s{S_T0}, 65536')
        for r in range(8):
            d = 64 + 64*pi + 32*rho + 4*r
            a(f'buffer_load_dwordx4 v[{d}:{d+3}], v{12 + (r>>2)}, s[{SRD0}:{SRD0+3}], s{S_T0} offen offset:{(r&3)*1024}')
stamp(5)
for pi, (sn, sl, sg) in enumerate(((S_NA, S_LA, S_GA), (S_NB, S_LBB, S_GB))):
    wait_prog(f's{sg}')
    for j in range(8): a(f'v_add_u32 v{8+0+j if False else 192+j}, s{sl}, v{WAD+j}')
    for rho in range(2):
        a(f's_waitcnt vmcnt({16*(1-pi) + 8*(1-rho)})')
        transpose_dump(64 + 64*pi + 32*rho, 192, rho*8192)
    a(f's_lshl_b32 s{S_T0}, s{sn}, 2')
    a(f'v_add_u32 v24, s{S_T0}, v{VZ}')
    one(f'ds_write_b32 v24, v{VONE} offset:{F_WO - FL}')
    stamp(6 + pi)
endwave()

stamp_flush_code()
a.lab('L_ABORT')
a.lab('L_END')
a('s_endpgm')
a.lab('L_CODE_END')
a.l.append('.fill 320, 4, 0xbf810000')
a.l.append(f'.set CODE_BYTES, L_CODE_END - {KNAME}')

hdr = f'''; GQA block fused persistent kernel
; @launch grid=(256,1,1) block=(512,1,1) lds=163840
.amdgcn_target "amdgcn-amd-amdhsa--gfx950"
.text
'''
tail = f'''.section .rodata,"a"
.p2align 6
.amdhsa_kernel {KNAME}
  .amdhsa_next_free_vgpr 256
  .amdhsa_next_free_sgpr 102
  .amdhsa_accum_offset 256
  .amdhsa_group_segment_fixed_size 0
  .amdhsa_kernarg_size 64
  .amdhsa_user_sgpr_count 2
  .amdhsa_user_sgpr_kernarg_segment_ptr 1
  .amdhsa_system_sgpr_workgroup_id_x 1
.end_amdhsa_kernel
'''
sys.stdout.write(hdr + a.txt() + tail)
```
